```python
import torch

def _softmax(x, axis=-1):
    return torch.softmax(x, dim=axis)
def _gelu(x):
    return torch.nn.functional.gelu(x, approximate="tanh")
def _silu(x):
    return torch.nn.functional.silu(x)
def _sigmoid(x):
    return torch.sigmoid(x)
def _layernorm(x, axis=-1, eps=1e-5):
    m = x.mean(dim=axis, keepdim=True)
    v = x.var(dim=axis, keepdim=True, unbiased=False)
    return (x - m) / torch.sqrt(v + eps)
def _scatter_add(tgt, idx, src, axis=0):
    return tgt.clone().index_add_(axis, idx, src)
def _segment_sum(src, seg, n):
    out = torch.zeros((n,) + src.shape[1:], dtype=src.dtype)
    return out.index_add_(0, seg, src)
def _pad(x, pw):
    flat = tuple(v for pair in reversed(pw) for v in pair)
    return torch.nn.functional.pad(x, flat)

kernel_name = 'recurrent_scan__spectral_fnet__mixer_channel_mlp__prompt'

def setup_inputs():

    _w = (lambda a: (lambda t: t.to(torch.bfloat16) if t.is_floating_point() else t)(torch.as_tensor(a)))
    def _A_setup():
        B, S, D = 1, 2048, 512
        ns = torch.arange(S)[:, None] * torch.arange(S)[None, :]
        nd = torch.arange(D)[:, None] * torch.arange(D)[None, :]
        Ws_re = torch.cos(-2.0 * torch.pi * ns / S).to(float)
        Ws_im = torch.sin(-2.0 * torch.pi * ns / S).to(float)
        Wd_re = torch.cos(-2.0 * torch.pi * nd / D).to(float)
        Wd_im = torch.sin(-2.0 * torch.pi * nd / D).to(float)
        return {
            "x": _w((lambda *s: torch.randn(*s, dtype=torch.bfloat16) * 0.05)(B, S, D)),
            "dft_seq_re": _w(Ws_re),
            "dft_seq_im": _w(Ws_im),
            "dft_hid_re": _w(Wd_re),
            "dft_hid_im": _w(Wd_im),
        }
    _A_in = _A_setup()

    def _B_setup():
        B, S, D, F = 1, 2048, 512, 1792
        return {
            "x": _w((lambda *s: torch.randn(*s, dtype=torch.bfloat16) * 0.05)(B, S, D)),
            "w1": _w((lambda *s: torch.randn(*s, dtype=torch.bfloat16) * 0.8)(D, F) * (D ** -0.5)),
            "b1": _w((lambda *s: torch.randn(*s, dtype=torch.bfloat16) * 0.4)(F)),
            "w2": _w((lambda *s: torch.randn(*s, dtype=torch.bfloat16) * 0.05)(F, D) * (F ** -0.5)),
            "b2": _w((lambda *s: torch.randn(*s, dtype=torch.bfloat16) * 0.05)(D)),
        }
    _B_in = _B_setup()

    return {
        "A_x": _A_in["x"],
        "A_dft_seq_re": _A_in["dft_seq_re"],
        "A_dft_seq_im": _A_in["dft_seq_im"],
        "A_dft_hid_re": _A_in["dft_hid_re"],
        "A_dft_hid_im": _A_in["dft_hid_im"],
        "B_x": _B_in["x"],
        "B_w1": _B_in["w1"],
        "B_b1": _B_in["b1"],
        "B_w2": _B_in["w2"],
        "B_b2": _B_in["b2"],
    }

def reference(A_x, A_dft_seq_re, A_dft_seq_im, A_dft_hid_re, A_dft_hid_im, B_x, B_w1, B_b1, B_w2, B_b2):
    def _A_ref(x, dft_seq_re, dft_seq_im, dft_hid_re, dft_hid_im):
        a = torch.einsum("bsd,ed->bse", x, dft_hid_re)
        b = torch.einsum("bsd,ed->bse", x, dft_hid_im)
        y = torch.einsum("ts,bse->bte", dft_seq_re, a) - torch.einsum("ts,bse->bte", dft_seq_im, b)
        return y

    def _B_ref(x, w1, b1, w2, b2):
        y = _layernorm(x, axis=-1)
        h = _gelu(torch.einsum("bsd,df->bsf", y, w1) + b1)
        return torch.einsum("bsf,fd->bsd", h, w2) + b2

    x = A_x
    xn = _layernorm(x, axis=-1)
    s = _A_ref(xn, A_dft_seq_re, A_dft_seq_im, A_dft_hid_re, A_dft_hid_im)
    g = _silu(_B_ref(xn, B_w1, B_b1, B_w2, B_b2))
    return x + s * g
```

```python
import re

REG = re.compile(r"\b([vas])(?:(\d+)\b|\[(\d+):(\d+)\])")
TRANS = ("v_exp_f32", "v_log_f32", "v_rcp_f32", "v_rsq_f32", "v_sqrt_f32", "v_sin_f32", "v_cos_f32")

def regs(tok):
    tok = tok.strip()
    out = set()
    if tok in ("vcc",): return {("s", 106), ("s", 107)}
    if tok == "vcc_lo": return {("s", 106)}
    if tok == "vcc_hi": return {("s", 107)}
    if tok == "m0": return {("s", 124)}
    if tok == "exec": return {("s", 126), ("s", 127)}
    for m in REG.finditer(tok):
        f = m.group(1)
        if m.group(2) is not None: out.add((f, int(m.group(2))))
        else:
            for r in range(int(m.group(3)), int(m.group(4)) + 1): out.add((f, r))
    return out

def split_ops(s):
    ops, depth, cur = [], 0, ""
    for ch in s:
        if ch == "[": depth += 1
        if ch == "]": depth -= 1
        if ch == "," and depth == 0:
            ops.append(cur.strip()); cur = ""
        else: cur += ch
    if cur.strip(): ops.append(cur.strip())
    return ops

class I:
    def __init__(self, text):
        self.text = text
        t = text.split(";")[0].strip()
        sp = t.split(None, 1)
        self.mn = sp[0]
        rest = sp[1] if len(sp) > 1 else ""
        ops = split_ops(rest)
        clean = []
        for o in ops:
            clean.append(o.split()[0] if o else o)
        self.mods = rest
        self.ops = clean
        mn = self.mn
        self.kind = ("mfma" if mn.startswith("v_mfma") else "valu" if mn.startswith("v_") else "ds" if mn.startswith("ds_")
                     else "vmem" if mn.startswith(("buffer_", "global_")) else "smem" if mn.startswith(("s_load", "s_memtime", "s_memrealtime")) else "salu")
        R = [regs(o) for o in clean]
        U = lambda l: set().union(*l) if l else set()
        self.dst, self.src = set(), set()
        self.wide_store = False
        self.lds_dma = False
        if self.kind == "mfma":
            self.dst = R[0]; self.A, self.B, self.C = R[1], R[2], R[3]; self.src = U(R[1:])
            self.passes = 8 if "32x32" in mn else 4
        elif self.kind == "valu":
            if mn.startswith("v_permlane") and "swap" in mn:
                self.dst = U(R[:2]); self.src = U(R[:2])
            elif mn == "v_nop": pass
            else:
                self.dst = R[0]; self.src = U(R[1:])
                if mn.startswith(("v_fmac", "v_dot2c", "v_writelane")): self.src |= R[0]
                if mn.startswith(("v_add_co", "v_sub_co", "v_addc_co")): self.dst |= R[1]
                if mn.startswith("v_cndmask") and len(R) == 3: self.src |= regs("vcc")
        elif self.kind == "ds":
            if mn.startswith(("ds_read", "ds_bpermute", "ds_swizzle")): self.dst = R[0]; self.src = U(R[1:])
            else:
                self.src = U(R); self.wide_store = "b128" in mn or "b96" in mn
                self.data = U(R[1:])
        elif self.kind == "vmem":
            if re.search(r"\blds\b", rest):
                self.lds_dma = True; self.src = U(R) | regs("m0")
            elif "load" in mn: self.dst = R[0]; self.src = U(R[1:])
            elif mn.startswith(("buffer_wbl2", "buffer_inv")): pass
            else:
                self.src = U(R); self.wide_store = "x4" in mn or "x3" in mn
                self.data = R[0] if mn.startswith("buffer_") else R[1]
        elif self.kind == "smem":
            self.dst = R[0]; self.src = U(R[1:])
        else:
            if mn.startswith(("s_cmp", "s_waitcnt", "s_barrier", "s_branch", "s_cbranch", "s_nop", "s_endpgm", "s_setprio", "s_sleep", "s_bitcmp")):
                self.src = U(R)
            else:
                self.dst = R[0] if R else set(); self.src = U(R[1:])
                if mn.startswith(("s_addk", "s_mulk")): self.src |= R[0]
                if "saveexec" in mn: self.dst |= regs("exec")
        self.trans = mn.replace("_e32", "").replace("_e64", "") in TRANS
        self.states = 1
        if mn == "s_nop": self.states = int(clean[0]) + 1

class Asm:
    def __init__(self):
        self.out = []
        self.hist = []
        self.lg = []
        self.vm = []
        self.smem_pending = set()
        self.ntok = 0
        self.nops = 0
        self.count = 0
    def raw(self, t): self.out.append(t)
    def comment(self, t): self.out.append("    ; " + t)
    def label(self, name):
        self.out.append(name + ":")
    def _emit(self, ins):
        self.out.append("    " + ins.text)
        self.hist.append(ins)
        if len(self.hist) > 40: self.hist.pop(0)
        self.count += 1
    def _need(self, ins):
        need = 0
        dist = 0
        touch = ins.src | ins.dst
        for p in reversed(self.hist):
            req = 0
            if p.kind == "valu":
                vd = {r for r in p.dst if r[0] in "va"}
                sd = {r for r in p.dst if r[0] == "s"}
                if ins.kind == "mfma" and vd & ins.src: req = max(req, 2)
                if p.trans and ins.kind == "valu" and not ins.trans and vd & ins.src: req = max(req, 1)
                if p.trans and ins.kind == "valu" and ins.trans and vd & ins.src: req = max(req, 1)
                if ins.mn.startswith(("v_readfirstlane", "v_readlane")) and vd & ins.src: req = max(req, 1)
                if ins.mn.startswith("v_permlane") and vd & ins.src: req = max(req, 2)
                if ins.kind == "valu" and ("dpp" in ins.mn or "row_" in ins.mods or "quad_perm" in ins.mods) and vd & ins.src: req = max(req, 2)
                if ins.kind == "vmem" and sd & ins.src: req = max(req, 5)
                if ins.kind == "valu" and sd & ins.src: req = max(req, 2)
                if ins.kind in ("salu", "smem") and sd & ins.src: req = max(req, 3)
                if ("op_sel" in p.mods and not p.mn.startswith("v_pk")) and ins.kind == "valu" and vd & touch: req = max(req, 1)
            if p.kind == "mfma":
                n = p.passes
                big = {8: 12, 4: 8}[n]
                if ins.kind == "mfma":
                    if p.dst & (ins.A | ins.B): req = max(req, big)
                    if p.dst & ins.C and not (p.dst == ins.C and p.passes == ins.passes): req = max(req, {8: 10, 4: 6}[n])
                    if p.dst & ins.dst and not (p.dst == ins.dst and p.passes == ins.passes): req = max(req, big)
                elif ins.kind in ("valu", "vmem", "ds"):
                    if p.dst & touch: req = max(req, big)
                    if ins.kind == "valu" and p.C & ins.dst: req = max(req, {8: 7, 4: 3}[n])
            if p.kind == "salu" and ("s", 124) in p.dst and ins.lds_dma: req = max(req, 1)
            if p.wide_store and ins.kind in ("valu", "mfma") and p.data & ins.dst: req = max(req, 2)
            if p.wide_store and ins.kind in ("ds", "vmem") and p.data & ins.dst: req = max(req, 1)
            need = max(need, req - dist)
            dist += p.states
            if dist >= 20: break
        return need
    def _waits(self, ins):
        touch = ins.src | ins.dst
        vmn = lgn = None
        for k in range(len(self.vm) - 1, -1, -1):
            if self.vm[k][0] & touch:
                vmn = len(self.vm) - 1 - k; break
        for k in range(len(self.lg) - 1, -1, -1):
            if self.lg[k] & touch:
                lgn = len(self.lg) - 1 - k; break
        if self.smem_pending & touch: lgn = 0
        if lgn is not None and self.smem_pending: lgn = 0
        self.wait(vmn, lgn)
    def wait(self, vm=None, lg=None):
        parts = []
        if vm is not None and vm < len(self.vm):
            n = min(vm, 63)
            parts.append(f"vmcnt({n})"); self.vm = self.vm[len(self.vm) - n:] if n else []
        if lg is not None and (lg < len(self.lg) or (self.smem_pending and lg == 0)):
            n = min(lg, 15)
            parts.append(f"lgkmcnt({n})"); self.lg = self.lg[len(self.lg) - n:] if n else []
            if n == 0: self.smem_pending = set()
        if parts: self._emit(I("s_waitcnt " + " ".join(parts)))
    def wait_tok(self, tok, lg=None):
        vm = None
        for k in range(len(self.vm) - 1, -1, -1):
            if self.vm[k][1] <= tok:
                vm = len(self.vm) - 1 - k; break
        self.wait(vm, lg)
    def force_wait(self, vm=None, lg=None):
        parts = []
        if vm is not None: parts.append(f"vmcnt({vm})"); self.vm = self.vm[len(self.vm) - vm:] if vm else []
        if lg is not None:
            parts.append(f"lgkmcnt({lg})"); self.lg = self.lg[len(self.lg) - lg:] if lg else []
            if lg == 0: self.smem_pending = set()
        self._emit(I("s_waitcnt " + " ".join(parts)))
    def e(self, text):
        ins = I(text)
        self._waits(ins)
        n = self._need(ins)
        while n > 0:
            k = min(n, 16)
            self._emit(I(f"s_nop {k-1}")); self.nops += k; n -= k
        self._emit(ins)
        tok = None
        if ins.kind == "ds":
            self.lg.append(set(ins.dst))
        elif ins.kind == "vmem" and not ins.mn.startswith(("buffer_wbl2", "buffer_inv")):
            self.ntok += 1; tok = self.ntok
            self.vm.append((set(ins.dst), tok))
            assert len(self.vm) <= 63, "too many outstanding vmem ops"
        elif ins.kind == "smem":
            self.smem_pending |= ins.dst
        return tok
    def many(self, s):
        for line in s.strip().split("\n"):
            line = line.strip()
            if not line or line.startswith(";"): continue
            if line.endswith(":"): self.label(line[:-1])
            else: self.e(line)
    def snapshot(self): return (list(self.hist), list(self.lg), list(self.vm), set(self.smem_pending))
    def restore(self, s): self.hist, self.lg, self.vm, self.smem_pending = list(s[0]), list(s[1]), list(s[2]), set(s[3])
    def text(self): return "\n".join(self.out) + "\n"

def vr(b, n=1, f="v"):
    return f"{f}{b}" if n == 1 else f"{f}[{b}:{b+n-1}]"
def ar(b, n=1): return vr(b, n, "a")
def sr(b, n=1): return vr(b, n, "s")

def interleave(asm, mains, fillers, per=None):
    n = len(mains)
    if per is None:
        per = [len(fillers) * (k + 1) // n - len(fillers) * k // n for k in range(n)]
    k = 0
    for m, c in zip(mains, per):
        m(asm) if callable(m) else asm.e(m)
        for f in fillers[k:k + c]:
            f(asm) if callable(f) else asm.e(f)
        k += c
    for f in fillers[k:]:
        f(asm) if callable(f) else asm.e(f)
```

```python
import sys, struct, math
from asmlib import *

NAME = "recurrent_scan__spectral_fnet__mixer_channel_mlp__prompt"
def f32(x): return "0x%08x" % struct.unpack("<I", struct.pack("<f", x))[0]

H_OFF, Z_OFF, FH_OFF, FZ_OFF, WS_SIZE = 0, 0x800000, 0xC00000, 0xC10000, 0x1000000
OOB = 0x40000000
NONCE_K = 0x9E3779B9
XS, WSL, SCR, MP = 0, 49152, 98304, 131072
LDS_BYTES = 163840
SX, SW1, SW2, SWS, SDBG, SOUT, SB1, SB2, SHRE, SHIM = 32, 36, 40, 44, 48, 52, 56, 60, 64, 68
sWave, sI, sJ, sRo, sWcol, sT1, sC, sW4K = 72, 73, 74, 75, 76, 77, 78, 79
sGK = 80
sXo, sWo = 82, 90
sT0, sT1_, sT2, sT3 = 98, 99, 100, 101
sHst = 16
sPc = 20
sW2b = 27
sW2l = 28
sNonce = 29
sM = 30
sKc0 = 31
sS2 = 4
sCnt = 5
sZf = 6
sLoc, sXcd = 7, 8
sTT = 9
sNd = 13
vL = 0
vXD, vWD, vXR, vTR = 4, 8, 12, 16
vSEL, vSUM, vCS, vSQ, vTMP = 20, 24, 28, 32, 34
vB1, vStale = 38, 39
vW2D, vW2T = 40, 44
vHS, vNon = 46, 47
vPF = 63
ACC, X0 = 64, 128
WF = 224

def gen(opt):
    a = Asm(); e = a.e
    stamp_n = [0]
    def stamp():
        if opt.get("stamps"):
            k = stamp_n[0]; stamp_n[0] += 1
            a.raw(f"    s_memtime s[{sT2}:{sT3}]"); a.raw("    s_waitcnt lgkmcnt(0)"); a.lg = []; a.smem_pending = set()
            a.raw(f"    v_writelane_b32 v62, s{sT2}, {k}")
    a.raw(f"{NAME}_kernel:")
    e("s_cmp_ge_u32 s2, 256"); e("s_cbranch_scc1 L_end")
    e("s_load_dwordx16 s[16:31], s[0:1], 0")
    e("s_load_dwordx8 s[4:11], s[0:1], 64")
    e("s_load_dwordx2 s[12:13], s[0:1], 96")
    if opt.get("stamps"):
        e("s_memtime s[98:99]"); e("s_memrealtime s[100:101]")
    e("s_getpc_b64 s[14:15]")
    a.label("L_pc")
    e("v_lshlrev_b32 v1, 7, v0")
    e("v_min_u32 v1, L_end-L_pc, v1")
    e(f"global_load_dword v{vPF}, v1, s[14:15]")
    e("v_lshrrev_b32 v1, 6, v0")
    e(f"v_and_b32 v{vL}, 63, v0")
    e(f"v_readfirstlane_b32 s{sWave}, v1")
    for srd, n in ((SX, 2097152), (SW1, 1835008), (SW2, 1835008), (SWS, WS_SIZE), (SDBG, 256), (SOUT, 2097152), (SB1, 3584), (SB2, 1024), (SHRE, 524288), (SHIM, 524288)):
        e(f"s_mov_b32 s{srd+2}, {n}"); e(f"s_mov_b32 s{srd+3}, 0x20000")
    e("s_and_b32 s3, s2, 7")
    e(f"s_lshr_b32 s{sT2}, s2, 3") if not opt.get("stamps") else e("s_lshr_b32 s97, s2, 3")
    loc = sT2 if not opt.get("stamps") else 97
    if opt.get("map", "48") == "48":
        e(f"s_lshr_b32 s{sI}, s3, 1"); e(f"s_lshl_b32 s{sI}, s{sI}, 2"); e(f"s_lshr_b32 s{sT1}, s{loc}, 3"); e(f"s_add_u32 s{sI}, s{sI}, s{sT1}")
        e(f"s_and_b32 s{sJ}, s3, 1"); e(f"s_lshl_b32 s{sJ}, s{sJ}, 3"); e(f"s_and_b32 s{sC}, s{loc}, 7"); e(f"s_add_u32 s{sJ}, s{sJ}, s{sC}")
        e(f"s_lshl_b32 s81, s{sT1}, 1"); e(f"s_add_u32 s81, s81, s{sC}")
    else:
        e(f"s_lshl_b32 s{sI}, s3, 1"); e(f"s_lshr_b32 s{sT1}, s{loc}, 4"); e(f"s_add_u32 s{sI}, s{sI}, s{sT1}")
        e(f"s_and_b32 s{sJ}, s{loc}, 15"); e(f"s_and_b32 s{sC}, s{loc}, 7")
        e(f"s_lshl_b32 s81, s{sT1}, 2"); e(f"s_add_u32 s81, s81, s{sJ}"); e("s_add_u32 s81, s81, s3")
        e(f"s_lshr_b32 s{sT1}, s{loc}, 3")
    e(f"s_lshl_b32 s80, s{sT1}, 1")
    e("s_lshl_b32 s3, s3, 2"); e(f"s_add_u32 s{sT1}, s{sT1}, s3")
    e(f"s_and_b32 s{sRo}, s{sJ}, 3")
    e(f"s_lshr_b32 s3, s{sJ}, 2"); e(f"s_mul_i32 s{sWcol}, s3, 448")
    e(f"s_lshl_b32 s3, s{sRo}, 7"); e(f"s_add_u32 s{sWcol}, s{sWcol}, s3")
    e(f"s_cmp_eq_u32 s{sRo}, 3"); e("s_cselect_b32 s3, 64, 0"); e(f"s_sub_u32 s{sWcol}, s{sWcol}, s3")
    e(f"s_lshl_b32 s{sW4K}, s{sWave}, 12")
    for n in range(8):
        e(f"s_add_u32 s3, s81, {n}"); e("s_and_b32 s3, s3, 7")
        e(f"s_lshl_b32 s{sXo+n}, s3, 7")
        if n < 7 or not opt.get("stamps"): e(f"s_mul_i32 s{sWo+n}, s3, {64*3584}")
    e(f"s_and_b32 s3, s{sWave}, 1"); e(f"s_lshl_b32 s14, s{sI}, 1"); e("s_add_u32 s14, s14, s3")
    e(f"s_lshr_b32 s3, s{sWave}, 1"); e("s_lshl_b32 s3, s3, 5"); e("s_add_u32 s14, s14, s3")
    e(f"v_lshrrev_b32 v1, 3, v{vL}"); e("v_lshlrev_b32 v1, 16, v1")
    e("s_lshl_b32 s3, s14, 10"); e("v_add_u32 v1, s3, v1")
    e(f"v_lshrrev_b32 v2, 4, v{vL}")
    e(f"v_and_b32 v3, 7, v{vL}"); e("v_xor_b32 v3, v3, v2")
    e(f"v_lshl_add_u32 v{vXD}, v3, 4, v1")
    e("v_xor_b32 v3, 4, v3"); e(f"v_lshl_add_u32 v{vXD+1}, v3, 4, v1")
    e(f"v_add_u32 v{vXD+1}, {8*65536-1024}, v{vXD+1}")
    e(f"v_add_u32 v{vXD+2}, {16*65536-2048}, v{vXD}")
    e(f"v_add_u32 v{vXD+3}, {16*65536-2048}, v{vXD+1}")
    e(f"s_lshl_b32 s3, s{sWave}, 4"); e("v_add_u32 v1, s3, v2"); e("v_mul_u32_u24 v1, 3584, v1")
    e(f"s_lshl_b32 s3, s{sWcol}, 1"); e("v_add_u32 v1, s3, v1")
    e(f"v_and_b32 v3, 15, v{vL}"); e("v_lshlrev_b32 v2, 2, v2"); e("v_xor_b32 v3, v3, v2")
    e(f"v_lshl_add_u32 v{vWD}, v3, 4, v1")
    for q in range(1, 4): e(f"v_add_u32 v{vWD+q}, {q*(4*3584-1024)}, v{vWD}")
    e(f"s_or_b32 s3, s{sI}, s{sJ}"); e(f"s_or_b32 s3, s3, s{sWave}"); e("s_cmp_eq_u32 s3, 0")
    e(f"s_cselect_b32 s15, 0, {OOB}")
    e(f"v_mov_b32 v1, s15")
    a.wait(lg=0)
    if opt.get("stamps"):
        e("v_mov_b32 v62, 0"); a.raw("    v_writelane_b32 v62, s98, 62"); a.raw("    v_writelane_b32 v62, s100, 63")
        e("s_add_u32 s3, s81, 7"); e("s_and_b32 s3, s3, 7"); e(f"s_mul_i32 s{sWo+7}, s3, {64*3584}")
    for srd, p in ((SX, 16), (SW1, 28), (SWS, 12), (SB1, 30), (SW2, 4), (SDBG, 10), (SOUT, 8), (SB2, 6), (SHRE, 22), (SHIM, 24)):
        e(f"s_mov_b64 s[{srd}:{srd+1}], s[{p}:{p+1}]")
    e(f"s_mov_b32 s3, {FH_OFF}")
    e(f"buffer_load_dword v{vStale}, v1, s[{SWS}:{SWS+3}], s3 offen sc1")
    stage_tok = {}
    def dma_list(n):
        sl = n % 3; L = []
        L.append(f"s_add_u32 m0, s{sW4K}, {XS + sl*16384}")
        for q in range(4): L.append(f"buffer_load_dwordx4 v{vXD+q}, s[{SX}:{SX+3}], s{sXo+n} offen offset:{q*1024} lds")
        L.append(f"s_add_u32 m0, s{sW4K}, {WSL + sl*16384}")
        for q in range(3): L.append(f"buffer_load_dwordx4 v{vWD+q}, s[{SW1}:{SW1+3}], s{sWo+n} offen offset:{q*1024} lds")
        def last(asm, n=n): stage_tok[n] = asm.e(f"buffer_load_dwordx4 v{vWD+3}, s[{SW1}:{SW1+3}], s{sWo+n} offen offset:3072 lds")
        L.append(last)
        return L
    def run(L):
        for x in L: x(a) if callable(x) else e(x)
    run(dma_list(0))
    d1 = dma_list(1)
    run(d1[:5])
    stamp()
    e(f"s_mov_b32 s{sS2}, s14"); e(f"s_mov_b32 s{sNd}, s15")
    e(f"s_and_b32 s{sKc0}, s81, 7")
    for p in range(7):
        e(f"s_add_u32 s3, s80, {p}"); e("s_cmp_ge_u32 s3, 7"); e(f"s_cselect_b32 s{sT0}, 7, 0"); e(f"s_sub_u32 s3, s3, s{sT0}")
        e(f"s_lshl_b32 s{sPc+p}, s3, 12")
    c1 = -2.0 * math.sqrt(2.0 / math.pi) * math.log2(math.e)
    e(f"s_mov_b32 s{sGK}, {f32(c1*0.044715)}"); e(f"s_mov_b32 s{sGK+1}, {f32(c1)}")
    e(f"s_cmp_eq_u32 s{sRo}, 2"); e(f"s_cselect_b32 s{sT1_}, 3, 7")
    e(f"s_cmp_eq_u32 s{sRo}, 3"); e(f"s_cselect_b32 s{sT1_}, 0, s{sT1_}")
    for u in range(4):
        e(f"s_add_u32 s3, s{sWave}, {u}"); e(f"s_and_b32 s{sTT+u}, s3, 3")
        e(f"s_lshl_b32 s3, s{sTT+u}, 11"); e(f"s_lshl_b32 s{sT0}, s{sWcol}, 6"); e(f"s_add_u32 s3, s3, s{sT0}")
        e(f"s_cmp_eq_u32 s{sTT+u}, s{sT1_}"); e(f"s_cselect_b32 s{sHst+u}, {OOB}, s3")
    e(f"s_mul_i32 s{sW2b}, s{sWave}, {448*1024}"); e(f"s_lshl_b32 s3, s{sC}, 7"); e(f"s_add_u32 s{sW2b}, s{sW2b}, s3")
    e(f"s_lshr_b32 s3, s{sWave}, 1"); e(f"s_mul_i32 s{sW2l}, s3, 49152"); e(f"s_and_b32 s3, s{sWave}, 1"); e("s_lshl_b32 s3, s3, 13"); e(f"s_add_u32 s{sW2l}, s{sW2l}, s3")
    e(f"s_lshr_b32 s3, s{sJ}, 2"); e(f"s_lshl_b32 s{sM}, s3, 1"); e(f"s_and_b32 s3, s{sRo}, 1"); e(f"s_add_u32 s{sM}, s{sM}, s3")
    e(f"v_and_b32 v1, 31, v{vL}")
    e(f"s_lshl_b32 s3, s{sWave}, 5"); e(f"s_add_u32 s3, s3, s{sWcol}"); e("s_lshl_b32 s3, s3, 1")
    e("v_lshlrev_b32 v2, 1, v1")
    e(f"buffer_load_ushort v{vB1}, v2, s[{SB1}:{SB1+3}], s3 offen")
    e("v_lshrrev_b32 v2, 1, v1"); e("v_and_b32 v2, 7, v2"); e(f"v_lshrrev_b32 v3, 5, v{vL}"); e("v_xor_b32 v2, v2, v3")
    e("v_lshlrev_b32 v2, 4, v2"); e("v_lshl_add_u32 v2, v1, 7, v2"); e(f"v_add_u32 v{vXR}, s{sW4K}, v2")
    for s in range(1, 4): e(f"v_xor_b32 v{vXR+s}, {s<<5}, v{vXR}")
    e(f"v_bfe_u32 v2, v{vL}, 2, 2")
    e("v_lshl_add_u32 v1, v3, 3, v2"); e("v_lshlrev_b32 v1, 8, v1")
    e(f"v_bfe_u32 v{vTMP}, v{vL}, 4, 1"); e(f"v_lshlrev_b32 v{vTMP}, 5, v{vTMP}")
    e(f"v_and_b32 v{vTMP+1}, 3, v{vL}"); e(f"v_lshl_add_u32 v{vTMP}, v{vTMP+1}, 3, v{vTMP}")
    e(f"v_add_u32 v1, v1, v{vTMP}"); e(f"v_add_u32 v1, {WSL}, v1")
    for u in range(4):
        e(f"v_xor_b32 v{vTMP+1}, s{sTT+u}, v2"); e(f"v_lshl_add_u32 v{vTR+u}, v{vTMP+1}, 6, v1")
    e("v_lshl_add_u32 v1, v3, 2, v2"); e(f"v_lshl_add_u32 v1, v1, 7, v{vTMP}"); e(f"v_add_u32 v1, s{sW2l}, v1")
    e(f"v_bfe_u32 v2, v{vL}, 3, 1"); e(f"s_and_b32 s3, s{sWave}, 1"); e("v_xor_b32 v2, s3, v2")
    e(f"v_lshl_add_u32 v{vW2T}, v2, 6, v1"); e(f"v_xor_b32 v{vW2T+1}, 64, v{vW2T}")
    e(f"v_lshrrev_b32 v1, 3, v{vL}"); e("v_lshlrev_b32 v1, 10, v1")
    e(f"v_bfe_u32 v2, v{vL}, 4, 1"); e("v_lshlrev_b32 v2, 2, v2"); e(f"v_and_b32 v3, 7, v{vL}"); e("v_xor_b32 v2, v2, v3")
    e(f"v_lshl_add_u32 v{vW2D}, v2, 4, v1")
    for q in range(1, 4): e(f"v_add_u32 v{vW2D+q}, {q*7168}, v{vW2D}")
    e(f"s_mul_i32 s3, s{sS2}, {112*1024}"); e(f"v_lshlrev_b32 v1, 4, v{vL}"); e(f"v_add_u32 v{vHS}, s3, v1")
    e(f"v_lshrrev_b32 v1, 4, v{vL}"); e(f"v_lshrrev_b32 v2, 2, v{vL}"); e("v_xor_b32 v1, v1, v2"); e("v_and_b32 v1, 1, v1")
    e("v_add_u32 v1, -1, v1"); e(f"v_and_b32 v{vSEL}, 0x3f803f80, v1")
    for k in range(1, 4): e(f"v_mov_b32 v{vSEL+k}, v{vSEL}")
    e(f"v_mov_b32 v{vSQ}, 0"); e(f"v_mov_b32 v{vSQ+1}, 0")
    e(f"s_cmp_lt_u32 s{sRo}, 2"); e("s_cbranch_scc1 L_nogen")
    snap = a.snapshot()
    e(f"v_and_b32 v1, 31, v{vL}"); e(f"s_lshl_b32 s3, s{sM}, 5"); e("v_add_u32 v1, s3, v1")
    e("v_mov_b32 v2, 0x100"); e("v_cmp_eq_u32 vcc, 0, v1"); e("v_cndmask_b32 v1, v1, v2, vcc")
    e("v_cvt_f32_u32 v1, v1"); e(f"v_mul_f32 v1, {f32(1/512)}, v1")
    e(f"s_add_u32 s3, s{sKc0}, s{sWave}"); e("s_and_b32 s3, s3, 7"); e("s_lshl_b32 s3, s3, 6")
    e(f"v_lshrrev_b32 v2, 5, v{vL}"); e("v_lshl_add_u32 v2, v2, 3, s3"); e("v_cvt_f32_u32 v2, v2"); e("v_mul_f32 v2, v1, v2")
    e(f"v_lshlrev_b32 v3, 4, v{vL}"); e(f"v_add_u32 v3, s{sW4K}, v3"); e(f"v_add_u32 v3, {MP}, v3")
    G = ACC
    for s in range(4):
        for jj in range(8): e(f"v_fmamk_f32 v{G+jj}, v1, {f32(16*s+jj)}, v2")
        for jj in range(8): e(f"v_cos_f32 v{G+8+jj}, v{G+jj}")
        for jj in range(8): e(f"v_sin_f32 v{G+16+jj}, v{G+jj}")
        o = G + 24 + (s & 1) * 8
        for jj in range(4): e(f"v_cvt_pk_bf16_f32 v{o+jj}, v{G+8+2*jj}, v{G+9+2*jj}")
        for jj in range(4): e(f"v_cvt_pk_bf16_f32 v{o+4+jj}, v{G+16+2*jj}, v{G+17+2*jj}")
        e(f"ds_write_b128 v3, v[{o}:{o+3}] offset:{s*1024}")
        e(f"ds_write_b128 v3, v[{o+4}:{o+7}] offset:{16384+s*1024}")
    a.wait(lg=0)
    a.label("L_nogen"); a.restore(snap); e("s_nop 1")
    run(d1[5:])
    e(f"v_add_u32 v1, {NONCE_K}, v{vStale}"); e("v_max_u32 v1, 1, v1")
    e(f"v_mov_b32 v2, s{sNd}")
    e(f"buffer_store_dword v1, v2, s[{SDBG}:{SDBG+3}], 0 offen sc1")
    e(f"v_lshlrev_b32 v{vB1}, 16, v{vB1}")
    e(f"v_and_b32 v1, 31, v{vL}"); e(f"s_lshl_b32 s3, s{sWave}, 9"); e("s_add_u32 s3, s3, %d" % SCR); e("v_lshl_add_u32 v1, v1, 2, s3")
    e(f"ds_write_b32 v1, v{vB1} offset:128")
    e(f"v_mov_b32 v{vB1}, v1")
    stamp()
    piece_tok = {}
    def piece_dma(p):
        sl = (p + 2) % 3; L = []
        for hf in range(2):
            L.append(f"s_lshl_b32 s3, s{sPc+p}, 4")
            L.append(f"s_add_u32 s3, s3, s{sW2b}")
            if hf: L.append("s_add_u32 s3, s3, 0x8000")
            L.append(f"s_add_u32 m0, s{sW2l}, {sl*16384 + hf*4096}")
            for q in range(4):
                t = f"buffer_load_dwordx4 v{vW2D+q}, s[{SW2}:{SW2+3}], s3 offen offset:{q*1024} lds"
                if hf == 1 and q == 3:
                    def last(asm, t=t, p=p): piece_tok[p] = asm.e(t)
                    L.append(last)
                else: L.append(t)
        return L
    def piece_tr(p):
        sl = (p + 2) % 3; L = [lambda asm, p=p: asm.wait_tok(piece_tok[p])]
        for st in range(4):
            for aa in range(2):
                for u in range(2):
                    d = ((4*p + st)*2 + aa)*4 + 2*u
                    L.append(f"ds_read_b64_tr_b16 a[{d}:{d+1}], v{vW2T+aa} offset:{sl*16384 + (16*st + 8*u)*128}")
        return L
    def reads(g):
        n, s = divmod(g, 4); sl = n % 3; b = WF + (g & 1)*16
        L = [f"ds_read_b128 v[{X0+4*g}:{X0+4*g+3}], v{vXR+s} offset:{XS + sl*16384}"]
        for u in range(4):
            for pt in range(2):
                L.append(f"ds_read_b64_tr_b16 a[{b+4*u+2*pt}:{b+4*u+2*pt+1}], v{vTR+u} offset:{sl*16384 + (16*s + 4*pt)*256}")
        return L
    a.wait_tok(stage_tok[0], lg=0); e("s_barrier")
    stamp()
    run(reads(0))
    dq = dma_list(2)
    for g in range(32):
        n, s = divmod(g, 4); b = WF + (g & 1)*16; x = X0 + 4*g
        def mm(u):
            c = "0" if g == 0 else f"v[{ACC+16*u}:{ACC+16*u+15}]"
            return f"v_mfma_f32_32x32x16_bf16 v[{ACC+16*u}:{ACC+16*u+15}], a[{b+4*u}:{b+4*u+3}], v[{x}:{x+3}], {c}"
        msum = f"v_mfma_f32_16x16x32_bf16 v[{vSUM}:{vSUM+3}], v[{vSEL}:{vSEL+3}], v[{x}:{x+3}], " + ("0" if g == 0 else f"v[{vSUM}:{vSUM+3}]")
        mcs = f"v_mfma_f32_16x16x32_bf16 v[{vCS}:{vCS+3}], a[{b}:{b+3}], v[{vSEL}:{vSEL+3}], " + ("0" if g == 0 else f"v[{vCS}:{vCS+3}]")
        sq = []
        for k in range(4):
            t = vTMP + 2*(k & 1)
            sq += [f"v_lshlrev_b32 v{t}, 16, v{x+k}", f"v_and_b32 v{t+1}, 0xffff0000, v{x+k}", f"v_fmac_f32 v{vSQ}, v{t}, v{t}", f"v_fmac_f32 v{vSQ+1}, v{t+1}, v{t+1}"]
        rd = reads(g + 1) if g < 31 else []
        first = mm(0)
        if s == 3 and n < 7:
            def first(asm, m=mm(0), n=n):
                asm.wait(lg=0); asm.e(m); asm.wait_tok(stage_tok[n+1]); asm.e("s_barrier")
            assert not dq
            if n + 3 <= 7: dq = dma_list(n + 3)
            else: dq = piece_dma(n + 3 - 8)
        take = []; nl = 0; lim = 3 if g < 3 else 2
        while dq and (nl < lim):
            it = dq.pop(0); take.append(it)
            if callable(it) or it.startswith("buffer"): nl += 1
        if g == 23:
            take.append(f"v_mov_b32 v{vNon}, 0")
            take.append(f"buffer_load_dword v{vNon}, v{vNon}, s[{SDBG}:{SDBG+3}], 0 offen sc1")
        h = (len(take) + 1) // 2
        gaps = [rd[0:3] + sq[0:3], rd[3:6] + sq[3:6], rd[6:9] + sq[6:9], take[:h] + sq[9:12], sq[12:14], take[h:] + sq[14:16]]
        mains = [first, mm(1), mm(2), mm(3), msum, mcs]
        for m, gp in zip(mains, gaps):
            m(a) if callable(m) else e(m)
            run(gp)
        if s == 3 and n in (1, 4): stamp()
    assert not dq
    stamp()
    vRho = 36
    e(f"v_add_f32 v{vSQ}, v{vSQ}, v{vSQ+1}"); e(f"v_mov_b32 v{vSQ+1}, v{vSQ}")
    e(f"v_permlane32_swap_b32 v{vSQ}, v{vSQ+1}"); e(f"v_add_f32 v{vSQ}, v{vSQ}, v{vSQ+1}")
    e(f"v_mul_f32 v1, {f32(1/512)}, v{vSUM}")
    e("v_mul_f32 v2, v1, v1"); e(f"v_mul_f32 v3, {f32(1/512)}, v{vSQ}"); e("v_sub_f32 v2, v3, v2"); e("v_max_f32 v2, 0, v2")
    e(f"v_add_f32 v3, {f32(1e-5)}, v2"); e("v_rsq_f32 v3, v3")
    e(f"ds_write_b32 v{vB1}, v3 offset:256")
    e("v_mul_f32 v2, v2, v3"); e(f"v_fmaak_f32 v2, v2, v3, {f32(1e-5)}"); e("v_rsq_f32 v2, v2")
    e(f"v_mul_f32 v{vRho}, v2, v3"); e(f"v_mul_f32 v{vRho+1}, v1, v{vRho}"); e(f"v_sub_f32 v{vRho+1}, 0, v{vRho+1}")
    e(f"v_lshrrev_b32 v1, 4, v{vL}"); e("v_lshlrev_b32 v1, 4, v1"); e(f"v_bfe_u32 v2, v{vL}, 2, 1"); e("v_lshl_add_u32 v1, v2, 6, v1")
    e(f"s_lshl_b32 s3, s{sWave}, 9"); e("s_add_u32 s3, s3, %d" % SCR); e("v_add_u32 v1, s3, v1")
    e("s_mov_b32 exec_lo, 0x00110011"); e("s_mov_b32 exec_hi, 0x00110011")
    e(f"ds_write_b128 v1, v[{vCS}:{vCS+3}]")
    e("s_mov_b64 exec, -1")
    vSA = 48
    e(f"v_lshrrev_b32 v1, 5, v{vL}"); e("v_lshlrev_b32 v1, 4, v1"); e(f"v_add_u32 v1, {SCR}, v1")
    for u in range(4):
        e(f"s_lshl_b32 s3, s{sTT+u}, 9"); e(f"v_add_u32 v{vSA+u}, s3, v1")
    a.wait(lg=0); e("s_barrier")
    stamp()
    CB = [4, 20]
    T = 52
    O = [60, 0]
    def csb_reads(hh):
        u, hf = divmod(hh, 2); cb = CB[hh & 1]
        return [f"ds_read_b128 v[{cb}:{cb+3}], v{vSA+u} offset:{64*hf}", f"ds_read_b128 v[{cb+4}:{cb+7}], v{vSA+u} offset:{64*hf+32}",
                f"ds_read_b128 v[{cb+8}:{cb+11}], v{vSA+u} offset:{128+64*hf}", f"ds_read_b128 v[{cb+12}:{cb+15}], v{vSA+u} offset:{128+64*hf+32}"]
    run(csb_reads(0))
    last_store = None
    for hh in range(8):
        u, hf = divmod(hh, 2); cb = CB[hh & 1]; A = ACC + 16*u + 8*hf
        P = lambda r, k: f"v[{r+2*k}:{r+2*k+1}]"
        V = []
        V += [f"v_pk_fma_f32 {P(T,k)}, v[{vRho}:{vRho+1}], {P(cb,k)}, {P(cb+8,k)} op_sel:[1,0,0] op_sel_hi:[1,1,1]" for k in range(4)]
        V += [f"v_pk_fma_f32 {P(A,k)}, {P(A,k)}, v[{vRho}:{vRho+1}], {P(T,k)} op_sel_hi:[1,0,1]" for k in range(4)]
        V += [f"v_pk_mul_f32 {P(T,k)}, {P(A,k)}, {P(A,k)}" for k in range(4)]
        V += [f"v_pk_fma_f32 {P(T,k)}, {P(T,k)}, s[{sGK}:{sGK+1}], s[{sGK}:{sGK+1}] op_sel:[0,0,1] op_sel_hi:[1,0,1]" for k in range(4)]
        V += [f"v_pk_mul_f32 {P(T,k)}, {P(A,k)}, {P(T,k)}" for k in range(4)]
        V += [f"v_exp_f32 v{T+k}, v{T+k}" for k in range(8)]
        V += [f"v_pk_add_f32 {P(T,k)}, {P(T,k)}, 1.0 op_sel_hi:[1,0]" for k in range(4)]
        V += [f"v_rcp_f32 v{T+k}, v{T+k}" for k in range(8)]
        V += [f"v_pk_mul_f32 {P(T,k)}, {P(A,k)}, {P(T,k)}" for k in range(4)]
        V += [f"v_cvt_pk_bf16_f32 v{A+k}, v{T+2*k}, v{T+2*k+1}" for k in range(4)]
        side = []
        if hh < 7: side += csb_reads(hh + 1)
        if hh == 0: side += piece_dma(2)
        if hf == 0 and u >= 1: side += piece_tr(u - 1)
        if hf == 1 and u >= 1: side = piece_dma(u + 2) + side
        if hf == 1 and u >= 1: a.wait(lg=0)
        k0 = 4
        run(V[:k0])
        interleave(a, V[k0:], side)
        last_store = e(f"buffer_store_dwordx4 v[{A}:{A+3}], v{vHS}, s[{SWS}:{SWS+3}], s{sHst+u} offen offset:{1024*hf} sc1")
    stamp()
    run(piece_tr(3)); a.wait(lg=0); run(piece_dma(6))
    e(f"v_readfirstlane_b32 s{sNonce}, v{vNon}")
    e(f"s_cmp_lg_u32 s{sNonce}, 0"); e("s_cbranch_scc1 L_have_nonce")
    snap = a.snapshot()
    e(f"s_mov_b32 s{sCnt}, 0"); e("v_mov_b32 v1, 0")
    a.label("L_nonce_poll")
    a.raw(f"    buffer_load_dword v{vNon}, v1, s[{SDBG}:{SDBG+3}], 0 offen sc1")
    a.raw("    s_waitcnt vmcnt(0)")
    a.raw(f"    v_readfirstlane_b32 s{sNonce}, v{vNon}")
    a.raw(f"    s_add_u32 s{sCnt}, s{sCnt}, 1"); a.raw(f"    s_cmp_gt_u32 s{sCnt}, 0x80000"); a.raw("    s_cbranch_scc1 L_end")
    a.raw(f"    s_cmp_eq_u32 s{sNonce}, 0"); a.raw("    s_cbranch_scc1 L_nonce_poll")
    a.label("L_have_nonce"); a.restore(snap)
    e(f"s_lshl_b32 s3, s{sS2}, 4"); e(f"s_add_u32 s3, s3, s{sJ}"); e("s_lshl_b32 s3, s3, 6"); e(f"s_add_u32 s3, s3, {FH_OFF}")
    vFlagA, vFlagV = 48, 49
    e(f"v_mov_b32 v{vFlagA}, s3"); e(f"v_mov_b32 v{vFlagV}, s{sNonce}")
    def hflag(asm):
        asm.wait_tok(last_store)
        asm.e("s_mov_b64 exec, 1")
        asm.e(f"buffer_store_dword v{vFlagV}, v{vFlagA}, s[{SWS}:{SWS+3}], 0 offen sc1")
        asm.e("s_mov_b64 exec, -1")
    run(piece_tr(4))
    e(f"s_mov_b32 s{sZf}, {OOB}")
    e(f"s_cmp_ge_u32 s{sRo}, 2"); e("s_cbranch_scc1 L_dft")
    snap = a.snapshot()
    run(piece_tr(5)); hflag(a); stamp(); run(piece_tr(6))
    a.force_wait(lg=0)
    e("s_branch L_join")
    a.label("L_dft"); a.restore(snap)
    if opt.get("stamps"): stamp_n[0] -= 1
    FC, FN = 20, 28
    e(f"v_and_b32 v1, 31, v{vL}"); e("v_lshlrev_b32 v1, 14, v1"); e(f"v_lshrrev_b32 v2, 5, v{vL}"); e("v_lshl_add_u32 v1, v2, 3, v1")
    for q in range(2):
        for pt in range(2):
            e(f"buffer_load_dwordx2 v[{FC+4*q+2*pt}:{FC+4*q+2*pt+1}], v1, s[{SHRE}:{SHRE+3}], 0 offen offset:{32*q+16*pt}")
            e(f"buffer_load_dwordx2 v[{FN+4*q+2*pt}:{FN+4*q+2*pt+1}], v1, s[{SHIM}:{SHIM+3}], 0 offen offset:{32*q+16*pt}")
    e(f"v_lshlrev_b32 v3, 4, v{vL}"); e(f"v_add_u32 v3, {MP}, v3")
    def mread(sg):
        b = WF + (sg & 3)*8
        return [f"ds_read_b128 a[{b}:{b+3}], v3 offset:{sg*1024}", f"ds_read_b128 a[{b+4}:{b+7}], v3 offset:{16384+sg*1024}"]
    run(mread(0)); run(mread(1))
    CL, CH, SL, SH = 64, 80, 96, 112
    side_q = piece_tr(5)
    for sg in range(16):
        b = WF + (sg & 3)*8
        lo, hi_ = X0 + 4*sg, X0 + 4*(sg + 16)
        def mf(acc, x, bb): return f"v_mfma_f32_32x32x16_bf16 v[{acc}:{acc+15}], v[{x}:{x+3}], a[{bb}:{bb+3}], " + ("0" if sg == 0 else f"v[{acc}:{acc+15}]")
        side = mread(sg + 2) if sg < 14 else []
        if sg == 6: side.append(hflag);
        if sg == 6 and opt.get("stamps"): side.append(lambda asm: stamp())
        if sg == 8: side_q += piece_tr(6)
        side += side_q[:4]; side_q = side_q[4:]
        if sg == 14:
            side += [f"v_lshrrev_b32 v1, 5, v{vL}", "v_lshlrev_b32 v1, 4, v1", f"s_lshl_b32 s3, s{sWave}, 9", f"s_add_u32 s3, s3, {SCR+256}", "v_add_u32 v1, s3, v1"]
            side += [f"ds_read_b128 v[{4+4*gq}:{7+4*gq}], v1 offset:{32*gq}" for gq in range(4)]
        interleave(a, [mf(CL, lo, b), mf(CH, hi_, b), mf(SL, lo, b+4), mf(SH, hi_, b+4)], side)
    assert not side_q
    a.wait(lg=0); e("s_barrier")
    e(f"v_and_b32 v1, 1, v{vL}"); e("v_lshlrev_b32 v1, 31, v1"); e("v_or_b32 v2, 0x3f800000, v1")
    P = lambda r, k: f"v[{r+2*k}:{r+2*k+1}]"
    for lo_, hi_ in ((CL, CH), (SL, SH)):
        for k in range(8): e(f"v_pk_fma_f32 {P(lo_,k)}, {P(hi_,k)}, v[2:3], {P(lo_,k)} op_sel_hi:[1,0,1]")
        for k in range(8): e(f"v_pk_mul_f32 {P(lo_,k)}, {P(lo_,k)}, {P(4,k)}")
    AB, BB, NA = 112, 120, 52
    for k in range(8): e(f"v_cvt_pk_bf16_f32 v{AB+k}, v{CL+2*k}, v{CL+2*k+1}")
    for k in range(8): e(f"v_cvt_pk_bf16_f32 v{BB+k}, v{SL+2*k}, v{SL+2*k+1}")
    for k in range(8): e(f"v_xor_b32 v{NA+k}, 0x80008000, v{AB+k}")
    ZR, ZI = 64, 80
    def zm(acc, f, o, first): e(f"v_mfma_f32_32x32x16_bf16 v[{acc}:{acc+15}], v[{f}:{f+3}], v[{o}:{o+3}], " + ("0" if first else f"v[{acc}:{acc+15}]"))
    for q in range(2):
        zm(ZR, FC+4*q, AB+4*q, q == 0); zm(ZI, FC+4*q, BB+4*q, q == 0)
        zm(ZR, FN+4*q, BB+4*q, False); zm(ZI, FN+4*q, NA+4*q, False)
    e(f"v_lshrrev_b32 v1, 5, v{vL}"); e("v_lshlrev_b32 v1, 11, v1"); e(f"v_and_b32 v2, 31, v{vL}"); e("v_lshl_add_u32 v1, v2, 4, v1")
    e(f"s_lshl_b32 s3, s{sWave}, 2"); e(f"s_add_u32 s3, s3, {MP}"); e("v_add_u32 v1, s3, v1")
    e(f"v_lshrrev_b32 v4, 5, v{vL}"); e("v_lshlrev_b32 v4, 16, v4"); e("v_lshl_add_u32 v4, v2, 4, v4")
    e(f"v_add_u32 v3, s{sW4K}, v3")
    for r in range(16):
        e(f"v_cvt_pk_bf16_f32 v{96+r}, v{ZR+r}, v{ZI+r}")
        e(f"ds_write_b32 v1, v{96+r} offset:{(8*(r>>2) + (r&3))*512}")
    e(f"s_lshl_b32 s3, s{sWave}, 19"); e(f"s_lshl_b32 s{sT0}, s{sI}, 12"); e(f"s_add_u32 s3, s3, s{sT0}")
    e(f"s_lshl_b32 s{sT0}, s{sM}, 9"); e(f"s_add_u32 s3, s3, s{sT0}"); e(f"s_add_u32 s3, s3, {Z_OFF}")
    e(f"s_lshl_b32 s{sT0}, s{sM}, 2"); e(f"s_add_u32 s{sT0}, s{sT0}, s{sWave}"); e(f"s_lshl_b32 s{sT0}, s{sT0}, 4"); e(f"s_add_u32 s{sT0}, s{sT0}, s{sI}")
    e(f"s_lshl_b32 s{sT0}, s{sT0}, 6"); e(f"s_add_u32 s{sZf}, s{sT0}, {FZ_OFF}")
    a.wait(lg=0); e("s_barrier")
    for k in range(4): e(f"ds_read_b128 v[{64+4*k}:{67+4*k}], v3 offset:{k*1024}")
    for k in range(4):
        e(f"buffer_store_dwordx4 v[{64+4*k}:{67+4*k}], v4, s[{SWS}:{SWS+3}], s3 offen sc1")
        if k < 3: e("s_add_u32 s3, s3, 0x20000")
    a.force_wait(lg=0)
    e("s_nop 1")
    a.label("L_join")
    a.vm = [(set(), 10**6 + k) for k in range(20)]; a.ntok = 2*10**6; a.lg = []; a.hist = []
    e("s_barrier")
    stamp()
    sCt0, sTt0, sMir, sT1p = 9, 10, 11, 12
    e(f"s_and_b32 s{sCt0}, s{sWave}, 1"); e(f"s_lshr_b32 s{sTt0}, s{sWave}, 1")
    vPA = 50
    e(f"v_bfe_u32 v1, v{vL}, 2, 1"); e("v_lshlrev_b32 v1, 9, v1"); e(f"v_and_b32 v2, 3, v{vL}"); e("v_add_u32 v1, v1, v2")
    e(f"s_lshl_b32 s3, s{sT1}, 4"); e(f"s_lshl_b32 s{sT0}, s{sWave}, 2"); e(f"s_add_u32 s3, s3, s{sT0}")
    e("v_add_u32 v1, s3, v1"); e("v_lshlrev_b32 v1, 6, v1"); e(f"v_add_u32 v{vPA}, {FH_OFF}, v1")
    e(f"buffer_load_dword v51, v{vPA}, s[{SWS}:{SWS+3}], 0 offen sc1")
    sCol = 13
    e(f"s_lshl_b32 s{sCol}, s{sC}, 6"); e(f"s_lshl_b32 s3, s{sCt0}, 5"); e(f"s_add_u32 s{sCol}, s{sCol}, s3")
    e(f"v_lshrrev_b32 v3, 5, v{vL}"); e("v_lshlrev_b32 v1, 3, v3"); e(f"s_lshl_b32 s3, s{sCol}, 1")
    for gq in range(4): e(f"buffer_load_dwordx2 v[{52+2*gq}:{53+2*gq}], v1, s[{SB2}:{SB2+3}], s3 offen offset:{16*gq}")
    vH = 36
    e(f"s_lshl_b32 s3, s{sTt0}, 5"); e(f"s_add_u32 s{sT0}, s3, s{sT1}")
    e(f"s_xor_b32 s{sT1_}, s{sT0}, 32")
    e(f"s_mul_i32 s3, s{sWave}, {28*1024}"); e(f"v_lshl_add_u32 v1, v{vL}, 4, s3")
    e(f"s_mul_i32 s3, s{sT0}, {112*1024}"); e(f"v_add_u32 v{vH}, s3, v1")
    e(f"s_mul_i32 s3, s{sT1_}, {112*1024}"); e(f"v_add_u32 v{vH+1}, s3, v1")
    vTok, vOut, vBase, vA0, vZA, vZP = 38, 39, 40, 41, 42, 43
    e(f"v_and_b32 v2, 31, v{vL}"); e(f"v_lshl_add_u32 v{vTok}, v2, 6, s{sT0}")
    e(f"s_lshl_b32 s3, s{sCol}, 1"); e(f"v_lshl_add_u32 v{vOut}, v{vTok}, 10, s3")
    e(f"s_cmp_ge_u32 s{sC}, 4"); e(f"s_cselect_b32 s{sMir}, 1, 0")
    e(f"s_mov_b32 s3, {f32(-1/2048)}"); e(f"s_cselect_b32 s3, {f32(1/2048)}, s3")
    e(f"v_cvt_f32_u32 v{vBase}, v{vTok}"); e(f"v_mul_f32 v{vBase}, s3, v{vBase}")
    e("v_lshlrev_b32 v1, 1, v3"); e("v_cvt_f32_u32 v1, v1"); e(f"v_mul_f32 v{vA0}, v1, v{vBase}")
    e(f"s_sub_u32 s3, 32, s{sT1}"); e("s_and_b32 s3, s3, 31"); e(f"s_cmp_eq_u32 s{sMir}, 1"); e(f"s_cselect_b32 s{sT1p}, s3, s{sT1}")
    e(f"v_add_u32 v1, s{sCol}, v2")
    e("v_sub_u32 v44, 0x200, v1"); e("v_and_b32 v44, 0xff, v44")
    e(f"s_cselect_b64 vcc, -1, 0"); e("s_nop 0"); e("v_cndmask_b32 v44, v1, v44, vcc")
    e(f"s_lshl_b32 s3, s{sT1p}, 16"); e(f"s_add_u32 s3, s3, {Z_OFF}")
    e("v_lshlrev_b32 v45, 12, v3"); e("v_lshl_add_u32 v45, v44, 4, v45"); e("v_add_u32 v45, s3, v45")
    e(f"v_mov_b32 v46, {OOB}"); e("v_cmp_eq_u32 vcc, 0, v1"); e(f"v_cndmask_b32 v{vZA}, v45, v46, vcc")
    e("v_lshrrev_b32 v44, 5, v44"); e(f"v_readlane_b32 s3, v44, 0"); e(f"v_readlane_b32 s{sT0}, v44, 31")
    e(f"v_mov_b32 v44, s3"); e(f"v_mov_b32 v45, s{sT0}"); e(f"v_and_b32 v46, 16, v{vL}"); e("v_cmp_eq_u32 vcc, 0, v46"); e("v_cndmask_b32 v44, v44, v45, vcc")
    e(f"s_lshr_b32 s3, s{sT1p}, 3"); e("v_lshl_add_u32 v44, v44, 2, s3"); e(f"v_and_b32 v45, 15, v{vL}"); e("v_lshl_add_u32 v44, v44, 4, v45")
    e("v_lshlrev_b32 v44, 6, v44"); e(f"v_add_u32 v{vZP}, {FZ_OFF}, v44")
    e(f"v_mov_b32 v44, s{sZf}")
    a.force_wait(vm=0)
    e("s_mov_b64 exec, 1")
    e(f"buffer_store_dword v{vFlagV}, v44, s[{SWS}:{SWS+3}], 0 offen sc1")
    e("s_mov_b64 exec, -1")
    for gq in range(4):
        for k in range(2):
            e(f"v_lshlrev_b32 v{ACC+4*gq+2*k}, 16, v{52+2*gq+k}"); e(f"v_and_b32 v{ACC+4*gq+2*k+1}, 0xffff0000, v{52+2*gq+k}")
    e(f"v_cmp_eq_u32 vcc, s{sNonce}, v51"); e("s_cmp_eq_u64 vcc, exec"); e("s_cbranch_scc1 L_h_ready")
    snap = a.snapshot()
    e(f"s_mov_b32 s{sCnt}, 0")
    a.label("L_h_poll")
    a.raw(f"    buffer_load_dword v51, v{vPA}, s[{SWS}:{SWS+3}], 0 offen sc1")
    a.raw(f"    s_add_u32 s{sCnt}, s{sCnt}, 1"); a.raw(f"    s_cmp_gt_u32 s{sCnt}, 0x80000"); a.raw("    s_cbranch_scc1 L_end")
    a.raw("    s_waitcnt vmcnt(0)")
    a.raw(f"    v_cmp_eq_u32 vcc, s{sNonce}, v51"); a.raw("    s_nop 2"); a.raw("    s_cmp_eq_u64 vcc, exec"); a.raw("    s_cbranch_scc0 L_h_poll")
    a.label("L_h_ready"); a.restore(snap)
    stamp()
    RING = 128
    def hload(st):
        p, s4 = divmod(st, 4); r = RING + (st % 16)*8
        return [f"buffer_load_dwordx4 v[{r+4*b}:{r+4*b+3}], v{vH+b}, s[{SWS}:{SWS+3}], s{sPc+p} offen offset:{s4*1024} sc1" for b in range(2)]
    for st in range(16): run(hload(st))
    MX = 4
    genq = []
    for q in range(8):
        for w_ in range(4):
            K = 4*q + (w_ & 1) + 32*(w_ >> 1); t = 44 + 3*(w_ & 1)
            genq.append([f"v_fmamk_f32 v{t}, v{vBase}, {f32(K)}, v{vA0}", f"v_cos_f32 v{t+1}, v{t}", f"v_sin_f32 v{t+2}, v{t}", f"v_cvt_pk_bf16_f32 v{MX+4*q+w_}, v{t+1}, v{t+2}"])
    gen_flat = []
    for k in range(0, 32, 2):
        A_, B_ = genq[k], genq[k+1]
        gen_flat += [A_[0], B_[0], A_[1], A_[2], B_[1], B_[2], A_[3], B_[3]]
    ZF = RING
    XF = RING + 4*8
    XU = 44
    ZSTEP = opt.get("zstep", 5)
    for st in range(28):
        r = RING + (st % 16)*8
        def mf(sig):
            aa, bb = sig & 1, sig >> 1
            w = (st*2 + aa)*4; acc = ACC + 16*sig
            c = "0" if (st == 0 and sig) else f"v[{acc}:{acc+15}]"
            return f"v_mfma_f32_32x32x16_bf16 v[{acc}:{acc+15}], a[{w}:{w+3}], v[{r+4*bb}:{r+4*bb+3}], {c}"
        side = gen_flat[:8]; gen_flat = gen_flat[8:]
        post = hload(st + 16) if st + 16 < 28 else []
        if st == ZSTEP: post.append(f"buffer_load_dword v51, v{vZP}, s[{SWS}:{SWS+3}], 0 offen sc1")
        interleave(a, [mf(0), mf(1), mf(2), mf(3)], side)
        run(post)
        if st == ZSTEP + 16:
            assert st >= 20
            e(f"v_cmp_eq_u32 vcc, s{sNonce}, v51"); e("s_cmp_eq_u64 vcc, exec"); e("s_cbranch_scc1 L_z_ready")
            snap = a.snapshot()
            e(f"s_mov_b32 s{sCnt}, 0")
            a.label("L_z_poll")
            a.raw(f"    buffer_load_dword v51, v{vZP}, s[{SWS}:{SWS+3}], 0 offen sc1")
            a.raw(f"    s_add_u32 s{sCnt}, s{sCnt}, 1"); a.raw(f"    s_cmp_gt_u32 s{sCnt}, 0x80000"); a.raw("    s_cbranch_scc1 L_end")
            a.raw("    s_waitcnt vmcnt(0)")
            a.raw(f"    v_cmp_eq_u32 vcc, s{sNonce}, v51"); a.raw("    s_nop 2"); a.raw("    s_cmp_eq_u64 vcc, exec"); a.raw("    s_cbranch_scc0 L_z_poll")
            a.label("L_z_ready"); a.restore(snap)
            for q in range(8):
                e(f"s_mov_b32 s3, {q*8192}")
                e(f"buffer_load_dwordx4 v[{ZF+4*q}:{ZF+4*q+3}], v{vZA}, s[{SWS}:{SWS+3}], s3 offen sc1")
            e(f"v_lshrrev_b32 v1, 5, v{vL}"); e(f"v_lshl_add_u32 v1, v1, 3, v{vOut}")
            for gq in range(4): e(f"buffer_load_dwordx2 v[{XF+2*gq}:{XF+2*gq+1}], v1, s[{SX}:{SX+3}], 0 offen offset:{16*gq}")
    assert not gen_flat
    stamp()
    e(f"v_lshlrev_b32 v1, 4, v{vL}")
    for sig in range(1, 4):
        e(f"s_xor_b32 s3, s{sWave}, {sig}"); e("s_mul_i32 s3, s3, 12288"); e(f"v_add_u32 v2, s3, v1") if sig != 2 else e("v_add_u32 v3, s3, v1")
        ad = "v3" if sig == 2 else "v2"
        for qd in range(4): e(f"ds_write_b128 {ad}, v[{ACC+16*sig+4*qd}:{ACC+16*sig+4*qd+3}] offset:{(sig-1)*4096+qd*1024}")
    SACC = RING + 6*8
    for q in range(8):
        e(f"v_mfma_f32_32x32x16_bf16 v[{SACC}:{SACC+15}], v[{ZF+4*q}:{ZF+4*q+3}], v[{MX+4*q}:{MX+4*q+3}], " + ("0" if q == 0 else f"v[{SACC}:{SACC+15}]"))
        for k in (2*q, 2*q+1):
            e((f"v_lshlrev_b32 v{XU+k}, 16, v{XF+k//2}") if k % 2 == 0 else f"v_and_b32 v{XU+k}, 0xffff0000, v{XF+k//2}")
    e(f"s_mul_i32 s3, s{sWave}, 12288"); e("v_add_u32 v1, s3, v1")
    a.wait(lg=0); e("s_barrier")
    for k in range(12): e(f"ds_read_b128 v[{ACC+16+4*k}:{ACC+19+4*k}], v1 offset:{k*1024}")
    e(f"s_mov_b32 s{sGK}, {f32(-math.log2(math.e))}")
    e(f"v_lshrrev_b32 v2, 5, v{vL}"); e(f"v_lshl_add_u32 v{vOut}, v2, 4, v{vOut}")
    T = 4
    for sig in range(1, 4):
        for k in range(8): e(f"v_pk_add_f32 {P(ACC,k)}, {P(ACC,k)}, {P(ACC+16*sig,k)}")
    for k in range(8): e(f"v_pk_mul_f32 {P(T,k)}, {P(ACC,k)}, s[{sGK}:{sGK+1}] op_sel_hi:[1,0]")
    for k in range(16): e(f"v_exp_f32 v{T+k}, v{T+k}")
    for k in range(8): e(f"v_pk_add_f32 {P(T,k)}, {P(T,k)}, 1.0 op_sel_hi:[1,0]")
    for k in range(16): e(f"v_rcp_f32 v{T+k}, v{T+k}")
    for k in range(8): e(f"v_pk_mul_f32 {P(T,k)}, {P(T,k)}, {P(ACC,k)}")
    for k in range(8): e(f"v_pk_fma_f32 {P(T,k)}, {P(T,k)}, {P(SACC,k)}, {P(XU,k)}")
    for k in range(8): e(f"v_cvt_pk_bf16_f32 v{20+k}, v{T+2*k}, v{T+2*k+1}")
    for q in range(2):
        e(f"v_permlane32_swap_b32 v{20+4*q}, v{22+4*q}"); e(f"v_permlane32_swap_b32 v{21+4*q}, v{23+4*q}")
        e(f"buffer_store_dwordx4 v[{20+4*q}:{23+4*q}], v{vOut}, s[{SOUT}:{SOUT+3}], 0 offen offset:{32*q}" + opt.get("outflag", ""))
    if opt.get("stamps"):
        stamp(); a.force_wait(vm=0); stamp()
        a.raw("    s_memrealtime s[100:101]"); a.raw("    s_waitcnt lgkmcnt(0)"); a.raw("    v_writelane_b32 v62, s100, 61")
        e(f"s_lshl_b32 s3, s2, 2"); e(f"s_add_u32 s3, s3, s{sWave}"); e("s_lshl_b32 s3, s3, 8"); e(f"s_add_u32 s3, s3, 0xE00000")
        e(f"v_lshlrev_b32 v1, 2, v{vL}")
        e(f"buffer_store_dword v62, v1, s[{SWS}:{SWS+3}], s3 offen")
    a.label("L_end")
    a.raw("    s_endpgm")
    return a

HEAD = open("cdna_kernels/%s.s.ref" % NAME).read().split("; Override launch geometry")[0]
def build(opt):
    a = gen(opt)
    s = HEAD + f"; @launch grid=(256,1,1) block=(256,1,1) lds={LDS_BYTES}\n"
    s += f""".amdgcn_target "amdgcn-amd-amdhsa--gfx950"
.text
.globl {NAME}_kernel
.p2align 8
.type {NAME}_kernel,@function
"""
    s += a.text()
    s += f""".section .rodata,"a"
.p2align 6
.amdhsa_kernel {NAME}_kernel
  .amdhsa_next_free_vgpr 512
  .amdhsa_next_free_sgpr 102
  .amdhsa_accum_offset 256
  .amdhsa_group_segment_fixed_size 0
  .amdhsa_kernarg_size 104
  .amdhsa_user_sgpr_count 2
  .amdhsa_user_sgpr_kernarg_segment_ptr 1
  .amdhsa_system_sgpr_workgroup_id_x 1
.end_amdhsa_kernel
"""
    return s, a

if __name__ == "__main__":
    opt = {}
    out = sys.argv[1]
    for kv in sys.argv[2:]:
        k, v = kv.split("=")
        opt[k] = int(v) if v.lstrip("-").isdigit() and k != "map" else v
    s, a = build(opt)
    open(out, "w").write(s)
    print("instrs", a.count, "nop states", a.nops)
```

```python
import sys, struct, math
from asmlib import *

NAME = "recurrent_scan__spectral_fnet__mixer_channel_mlp__prompt"
def f32(x): return "0x%08x" % struct.unpack("<I", struct.pack("<f", x))[0]

H_OFF, FH_OFF, FZ_OFF, Z_OFF, WS_SIZE = 0, 0x700000, 0x710000, 0x800000, 0x1000000
OOB = 0x40000000
NONCE_K = 0x9E3779B9
XS, WSL, SCR, MP = 0, 49152, 98304, 131072
RED = 98304
LDS_BYTES = 163840
SX, SW1, SW2, SWS, SDBG, SOUT, SB1, SB2, SHRE, SHIM = 32, 36, 40, 44, 48, 52, 56, 60, 64, 68
sWave, sI, sJ, sRo, sWcol, sT1, sC, sW4K = 72, 73, 74, 75, 76, 77, 78, 79
sGK = 80
sXo, sWo = 82, 90
sT0, sT1_, sT2, sT3 = 98, 99, 100, 101
sHst = 16
sPc = 20
sW2b = 27
sW2l = 28
sNonce = 29
sM = 30
sKc0 = 31
sS2 = 4
sCnt = 5
sZf = 6
sSkip = 7
sTT = 9
sNd = 13
vL = 0
vXD, vWD, vXR, vTR = 4, 8, 12, 16
vSEL, vSUM, vCS, vSQ, vTMP = 20, 24, 28, 32, 34
vB1, vStale = 38, 39
vW2D, vW2T = 40, 44
vHS, vNon = 46, 47
vSA = 48
vCSA = 60
vPF = 63
ACC, X0 = 64, 128
WF = 224

def gen(opt):
    a = Asm(); e = a.e
    ST = opt.get("stamps", 0)
    names = []
    def stamp(name="", lvl=1):
        if ST >= lvl:
            if name in names: k = names.index(name)
            else: names.append(name); k = len(names) - 1
            assert k < 60
            a.raw(f"    s_memtime s[{sT2}:{sT3}]"); a.raw("    s_waitcnt lgkmcnt(0)"); a.lg = []; a.smem_pending = set()
            a.raw(f"    v_writelane_b32 v62, s{sT2}, {k}")
    def run(L):
        for x in L: x(a) if callable(x) else e(x)
    FL = opt.get("flagst", " sc1"); PL = opt.get("poll", " sc1"); HL = opt.get("hld", " sc1"); HS = opt.get("hst", " sc1")
    def poll_loop(lbl, dst, addr, srd):
        e(f"v_cmp_eq_u32 vcc, s{sNonce}, v{dst}"); e("s_cmp_eq_u64 vcc, exec"); e(f"s_cbranch_scc1 {lbl}_ready")
        snap = a.snapshot()
        e(f"s_mov_b32 s{sCnt}, 0")
        a.label(f"{lbl}_poll")
        a.raw(f"    buffer_load_dword v{dst}, v{addr}, s[{srd}:{srd+3}], 0 offen{PL}")
        a.raw(f"    s_add_u32 s{sCnt}, s{sCnt}, 1"); a.raw(f"    s_cmp_gt_u32 s{sCnt}, 0x80000"); a.raw("    s_cbranch_scc1 L_end")
        a.raw("    s_waitcnt vmcnt(0)")
        a.raw(f"    v_cmp_eq_u32 vcc, s{sNonce}, v{dst}"); a.raw("    s_nop 2"); a.raw("    s_cmp_eq_u64 vcc, exec"); a.raw(f"    s_cbranch_scc0 {lbl}_poll")
        a.label(f"{lbl}_ready"); a.restore(snap)

    a.raw(f"{NAME}_kernel:")
    e("s_load_dwordx16 s[16:31], s[0:1], 0")
    e("s_getpc_b64 s[14:15]")
    a.label("L_pc")
    e("s_cmp_ge_u32 s2, 256"); e("s_cbranch_scc1 L_end")
    e("v_lshlrev_b32 v1, 7, v0")
    e("v_min_u32 v1, L_end-L_pc, v1")
    e(f"global_load_dword v{vPF}, v1, s[14:15]")
    e("s_load_dwordx8 s[4:11], s[0:1], 64")
    e("s_load_dwordx2 s[12:13], s[0:1], 96")
    if ST: e("s_memtime s[94:95]"); e("s_memrealtime s[96:97]")
    e("v_lshrrev_b32 v1, 6, v0")
    e(f"v_and_b32 v{vL}, 63, v0")
    e(f"v_readfirstlane_b32 s{sWave}, v1")
    R = opt.get("rot", 8)
    e("s_and_b32 s3, s2, 7")
    e(f"s_lshr_b32 s{sT1}, s2, 6")
    e(f"s_bfe_u32 s{sC}, s2, 0x30003")
    e(f"s_lshr_b32 s{sI}, s3, 1"); e(f"s_lshl2_add_u32 s{sI}, s{sI}, s{sT1}")
    e(f"s_and_b32 s{sJ}, s3, 1"); e(f"s_lshl3_add_u32 s{sJ}, s{sJ}, s{sC}")
    if R == 8: e(f"s_lshl1_add_u32 s81, s{sT1}, s{sC}")
    elif R == 4: e(f"s_add_u32 s81, s{sT1}, s{sC}"); e("s_lshl_b32 s81, s81, 1")
    elif R == 2: e(f"s_add_u32 s81, s{sT1}, s{sC}"); e("s_lshl_b32 s81, s81, 2")
    else: e("s_mov_b32 s81, 0")
    if opt.get("rotx", 0): e(f"s_mul_i32 s80, s3, {opt['rotx']}"); e("s_add_u32 s81, s81, s80")
    e(f"s_and_b32 s{sRo}, s{sJ}, 3")
    e(f"s_lshr_b32 s{sT0}, s{sJ}, 2"); e(f"s_mul_i32 s{sWcol}, s{sT0}, 896")
    e(f"s_mul_i32 s{sT0}, s{sRo}, 0xe0"); e(f"s_add_u32 s{sT0}, s{sT0}, 64"); e(f"s_and_b32 s{sT0}, s{sT0}, 0xffffff80")
    e(f"s_add_u32 s{sWcol}, s{sWcol}, s{sT0}")
    e(f"s_lshl_b32 s{sW4K}, s{sWave}, 12")
    def soff(n):
        return [f"s_add_u32 s{sT0}, s81, {n}", f"s_and_b32 s{sT0}, s{sT0}, 7", f"s_lshl_b32 s{sXo+n}, s{sT0}, 7", f"s_mul_i32 s{sWo+n}, s{sT0}, {64*3584}"]
    run(soff(0))
    e(f"s_mul_i32 s{sT0}, s{sWave}, 0x11"); e(f"s_and_b32 s{sT0}, s{sT0}, 0x21"); e(f"s_lshl1_add_u32 s14, s{sI}, s{sT0}")
    e(f"v_lshrrev_b32 v1, 3, v{vL}"); e("v_lshlrev_b32 v1, 16, v1")
    e(f"s_lshl_b32 s{sT0}, s14, 10"); e(f"v_add_u32 v1, s{sT0}, v1")
    e(f"v_lshrrev_b32 v2, 4, v{vL}")
    e(f"v_and_b32 v3, 7, v{vL}"); e("v_xor_b32 v3, v3, v2")
    e(f"v_lshl_add_u32 v{vXD}, v3, 4, v1")
    e(f"v_xor_b32 v3, 64, v{vXD}")
    e(f"v_add_u32 v{vXD+1}, {8*65536-1024}, v3")
    e(f"v_add_u32 v{vXD+2}, {16*65536-2048}, v{vXD}")
    e(f"v_add_u32 v{vXD+3}, {24*65536-3072}, v3")
    e(f"v_lshl_add_u32 v1, s{sWave}, 4, v2"); e("v_mul_u32_u24 v1, 0xe00, v1")
    e(f"v_and_b32 v3, 15, v{vL}"); e("v_lshlrev_b32 v2, 2, v2"); e("v_xor_b32 v3, v3, v2")
    e(f"v_lshl_add_u32 v1, v3, 4, v1"); e(f"v_add_u32 v{vWD}, s{sWcol}, v1")
    for q in range(1, 4): e(f"v_add_u32 v{vWD+q}, {q*(4*3584-1024)}, v{vWD}")
    for srd, n in ((SX, 2097152), (SW1, 1835008)):
        e(f"s_mov_b32 s{srd+2}, {n}"); e(f"s_mov_b32 s{srd+3}, 0x20000")
    e(f"s_mov_b32 m0, s{sW4K}")
    a.wait(lg=0)
    e(f"s_mov_b64 s[{SX}:{SX+1}], s[16:17]"); e(f"s_mov_b64 s[{SW1}:{SW1+1}], s[28:29]")
    stage_tok = {}
    def dma_list(n):
        sl = n % 3; L = []
        L.append(f"s_add_u32 m0, s{sW4K}, {XS + sl*16384}")
        for q in range(4): L.append(f"buffer_load_dwordx4 v{vXD+q}, s[{SX}:{SX+3}], s{sXo+n} offen offset:{q*1024} lds")
        L.append(f"s_add_u32 m0, s{sW4K}, {WSL + sl*16384}")
        for q in range(3): L.append(f"buffer_load_dwordx4 v{vWD+q}, s[{SW1}:{SW1+3}], s{sWo+n} offen offset:{q*1024} lds")
        def last(asm, n=n): stage_tok[n] = asm.e(f"buffer_load_dwordx4 v{vWD+3}, s[{SW1}:{SW1+3}], s{sWo+n} offen offset:3072 lds")
        L.append(last)
        return L
    run(dma_list(0)[1:])
    run(soff(1))
    d1 = dma_list(1)
    run(d1[:5])
    if ST:
        e("v_mov_b32 v62, 0"); a.raw("    v_writelane_b32 v62, s94, 62"); a.raw("    v_writelane_b32 v62, s96, 63")
    stamp("dma0")
    for srd, p, n in ((SWS, 12, WS_SIZE), (SB1, 30, 3584), (SW2, 4, 1835008), (SDBG, 10, 256), (SOUT, 8, 2097152), (SB2, 6, 1024), (SHRE, 22, 524288), (SHIM, 24, 524288)):
        e(f"s_mov_b64 s[{srd}:{srd+1}], s[{p}:{p+1}]"); e(f"s_mov_b32 s{srd+2}, {n}"); e(f"s_mov_b32 s{srd+3}, 0x20000")
    e(f"s_mov_b32 s{sS2}, s14")
    e(f"s_or_b32 s{sT0}, s{sI}, s{sJ}"); e(f"s_or_b32 s{sT0}, s{sT0}, s{sWave}"); e(f"s_cmp_eq_u32 s{sT0}, 0")
    e(f"s_cselect_b32 s{sNd}, 0, {OOB}")
    e(f"v_mov_b32 v1, s{sNd}"); e(f"s_mov_b32 s{sT0}, {FH_OFF}")
    e(f"buffer_load_dword v{vStale}, v1, s[{SWS}:{SWS+3}], s{sT0} offen sc1")
    e(f"v_and_b32 v1, 31, v{vL}")
    e(f"s_lshl_b32 s{sT0}, s{sWave}, 6"); e(f"s_add_u32 s{sT0}, s{sT0}, s{sWcol}")
    e("v_lshlrev_b32 v2, 1, v1")
    e(f"buffer_load_ushort v{vB1}, v2, s[{SB1}:{SB1+3}], s{sT0} offen")
    if opt.get("touch", 1):
        e(f"v_and_b32 v2, 7, v{vL}"); e("v_lshlrev_b32 v2, 21, v2"); e("v_min_u32 v2, 0x800000, v2"); e("v_add_u32 v2, 0x1fff80, v2")
        e(f"buffer_load_dword v61, v2, s[{SWS}:{SWS+3}], 0 offen sc1")
        e("v_mov_b32 v2, 0")
        for k, srd in enumerate((SW2, SOUT, SB2, SHRE, SHIM, SDBG)): e(f"buffer_load_dword v{52+k}, v2, s[{srd}:{srd+3}], 0 offen sc1")
    e(f"s_lshl_b32 s80, s{sT1}, 1")
    e(f"s_lshl2_add_u32 s{sT1}, s3, s{sT1}")
    for n in range(2, 8): run(soff(n))
    e(f"s_and_b32 s{sKc0}, s81, 7")
    for p in range(7):
        e(f"s_add_u32 s3, s80, {p}"); e("s_cmp_ge_u32 s3, 7"); e(f"s_cselect_b32 s{sT0}, 7, 0"); e(f"s_sub_u32 s3, s3, s{sT0}")
        e(f"s_lshl_b32 s{sPc+p}, s3, 12")
    c1 = -2.0 * math.sqrt(2.0 / math.pi) * math.log2(math.e)
    e(f"s_mov_b32 s{sGK}, {f32(c1*0.044715)}"); e(f"s_mov_b32 s{sGK+1}, {f32(c1)}")
    e(f"s_cmp_eq_u32 s{sRo}, 2"); e(f"s_cselect_b32 s{sSkip}, 3, 7")
    e(f"s_cmp_eq_u32 s{sRo}, 3"); e(f"s_cselect_b32 s{sSkip}, 0, s{sSkip}")
    e(f"s_lshl_b32 s{sT0}, s{sWcol}, 5")
    for u in range(4):
        e(f"s_add_u32 s3, s{sWave}, {u}"); e(f"s_and_b32 s{sTT+u}, s3, 3")
        e(f"s_lshl_b32 s3, s{sTT+u}, 11"); e(f"s_add_u32 s{sHst+u}, s3, s{sT0}")
    e(f"s_mul_i32 s{sW2b}, s{sWave}, {448*1024}"); e(f"s_lshl_b32 s3, s{sC}, 7"); e(f"s_add_u32 s{sW2b}, s{sW2b}, s3")
    e(f"s_lshr_b32 s3, s{sWave}, 1"); e(f"s_mul_i32 s{sW2l}, s3, 49152"); e(f"s_and_b32 s3, s{sWave}, 1"); e("s_lshl_b32 s3, s3, 13"); e(f"s_add_u32 s{sW2l}, s{sW2l}, s3")
    e(f"s_lshr_b32 s3, s{sJ}, 2"); e(f"s_and_b32 s{sM}, s{sRo}, 1"); e(f"s_lshl1_add_u32 s{sM}, s3, s{sM}")
    e("v_lshrrev_b32 v2, 1, v1"); e("v_and_b32 v2, 7, v2"); e(f"v_lshrrev_b32 v3, 5, v{vL}"); e("v_xor_b32 v2, v2, v3")
    e("v_lshlrev_b32 v2, 4, v2"); e("v_lshl_add_u32 v2, v1, 7, v2"); e(f"v_add_u32 v{vXR}, s{sW4K}, v2")
    for s in range(1, 4): e(f"v_xor_b32 v{vXR+s}, {s<<5}, v{vXR}")
    e(f"v_lshlrev_b32 v2, 4, v3"); e(f"v_add_u32 v2, {SCR}, v2")
    for u in range(4): e(f"v_lshl_add_u32 v{vSA+u}, s{sTT+u}, 9, v2")
    e(f"v_bfe_u32 v2, v{vL}, 2, 2")
    e("v_lshl_add_u32 v1, v3, 3, v2"); e("v_lshlrev_b32 v1, 8, v1")
    e(f"v_bfe_u32 v{vTMP}, v{vL}, 4, 1"); e(f"v_lshlrev_b32 v{vTMP}, 5, v{vTMP}")
    e(f"v_and_b32 v{vTMP+1}, 3, v{vL}"); e(f"v_lshl_add_u32 v{vTMP}, v{vTMP+1}, 3, v{vTMP}")
    e(f"v_add_u32 v1, v1, v{vTMP}"); e(f"v_add_u32 v1, {WSL}, v1")
    for u in range(4):
        e(f"v_xor_b32 v{vTMP+1}, s{sTT+u}, v2"); e(f"v_lshl_add_u32 v{vTR+u}, v{vTMP+1}, 6, v1")
    e("v_lshl_add_u32 v1, v3, 2, v2"); e(f"v_lshl_add_u32 v1, v1, 7, v{vTMP}"); e(f"v_add_u32 v1, s{sW2l}, v1")
    e(f"v_bfe_u32 v2, v{vL}, 3, 1"); e(f"s_and_b32 s3, s{sWave}, 1"); e("v_xor_b32 v2, s3, v2")
    e(f"v_lshl_add_u32 v{vW2T}, v2, 6, v1"); e(f"v_xor_b32 v{vW2T+1}, 64, v{vW2T}")
    e(f"v_lshrrev_b32 v1, 3, v{vL}"); e("v_lshlrev_b32 v1, 10, v1")
    e(f"v_bfe_u32 v2, v{vL}, 4, 1"); e("v_lshlrev_b32 v2, 2, v2"); e(f"v_and_b32 v3, 7, v{vL}"); e("v_xor_b32 v2, v2, v3")
    e(f"v_lshl_add_u32 v{vW2D}, v2, 4, v1")
    for q in range(1, 4): e(f"v_add_u32 v{vW2D+q}, {q*7168}, v{vW2D}")
    e(f"s_mul_i32 s3, s{sS2}, {112*1024}"); e(f"v_lshl_add_u32 v{vHS}, v{vL}, 4, s3")
    e(f"v_lshrrev_b32 v1, 4, v{vL}"); e("v_lshlrev_b32 v3, 4, v1"); e(f"v_bfe_u32 v2, v{vL}, 2, 1"); e("v_lshl_add_u32 v3, v2, 6, v3")
    e(f"s_lshl_b32 s3, s{sWave}, 9"); e("s_add_u32 s3, s3, %d" % SCR); e(f"v_add_u32 v{vCSA}, s3, v3")
    e("v_xor_b32 v1, v1, v2"); e("v_and_b32 v1, 1, v1")
    e("v_add_u32 v1, -1, v1"); e(f"v_and_b32 v{vSEL}, 0x3f803f80, v1")
    for k in range(1, 4): e(f"v_mov_b32 v{vSEL+k}, v{vSEL}")
    e(f"v_mov_b32 v{vSQ}, 0"); e(f"v_mov_b32 v{vSQ+1}, 0")
    e(f"s_cmp_lt_u32 s{sRo}, 2"); e("s_cbranch_scc1 L_nogen")
    snap = a.snapshot()
    e(f"v_and_b32 v1, 31, v{vL}"); e(f"s_lshl_b32 s3, s{sM}, 5"); e("v_add_u32 v1, s3, v1")
    e("v_mov_b32 v2, 0x100"); e("v_cmp_eq_u32 vcc, 0, v1"); e("v_cndmask_b32 v1, v1, v2, vcc")
    e("v_cvt_f32_u32 v1, v1"); e(f"v_mul_f32 v1, {f32(1/512)}, v1")
    e(f"s_add_u32 s3, s{sKc0}, s{sWave}"); e("s_and_b32 s3, s3, 7"); e("s_lshl_b32 s3, s3, 6")
    e(f"v_lshrrev_b32 v2, 5, v{vL}"); e("v_lshl_add_u32 v2, v2, 3, s3"); e("v_cvt_f32_u32 v2, v2"); e("v_mul_f32 v2, v1, v2")
    e(f"v_lshlrev_b32 v3, 4, v{vL}"); e(f"v_add_u32 v3, s{sW4K}, v3"); e(f"v_add_u32 v3, {MP}, v3")
    G = ACC
    for s in range(4):
        for jj in range(8): e(f"v_fmamk_f32 v{G+jj}, v1, {f32(16*s+jj)}, v2")
        for jj in range(8): e(f"v_cos_f32 v{G+8+jj}, v{G+jj}")
        for jj in range(8): e(f"v_sin_f32 v{G+16+jj}, v{G+jj}")
        o = G + 24 + (s & 1) * 8
        for jj in range(4): e(f"v_cvt_pk_bf16_f32 v{o+jj}, v{G+8+2*jj}, v{G+9+2*jj}")
        for jj in range(4): e(f"v_cvt_pk_bf16_f32 v{o+4+jj}, v{G+16+2*jj}, v{G+17+2*jj}")
        e(f"ds_write_b128 v3, v[{o}:{o+3}] offset:{s*1024}")
        e(f"ds_write_b128 v3, v[{o+4}:{o+7}] offset:{16384+s*1024}")
    a.wait(lg=0)
    a.label("L_nogen"); a.restore(snap); e("s_nop 1")
    run(d1[5:])
    stamp("setup")
    piece_tok = {}
    def piece_dma(p):
        sl = (p + 2) % 3; L = []
        for hf in range(2):
            if hf == 0: L += [f"s_lshl4_add_u32 s3, s{sPc+p}, s{sW2b}"]
            else: L.append("s_add_u32 s3, s3, 0x8000")
            L.append(f"s_add_u32 m0, s{sW2l}, {sl*16384 + hf*4096}")
            for q in range(4):
                t = f"buffer_load_dwordx4 v{vW2D+q}, s[{SW2}:{SW2+3}], s3 offen offset:{q*1024} lds"
                if hf == 1 and q == 3:
                    def last(asm, t=t, p=p): piece_tok[p] = asm.e(t)
                    L.append(last)
                else: L.append(t)
        return L
    def piece_tr(p):
        sl = (p + 2) % 3; L = [lambda asm, p=p: asm.wait_tok(piece_tok[p])]
        for st in range(4):
            for aa in range(2):
                for u in range(2):
                    d = ((4*p + st)*2 + aa)*4 + 2*u
                    L.append(f"ds_read_b64_tr_b16 a[{d}:{d+1}], v{vW2T+aa} offset:{sl*16384 + (16*st + 8*u)*128}")
        return L
    LG0 = lambda asm: asm.wait(lg=0)
    def reads(g):
        n, s = divmod(g, 4); sl = n % 3; b = WF + (g & 1)*16
        L = [f"ds_read_b128 v[{X0+4*g}:{X0+4*g+3}], v{vXR+s} offset:{XS + sl*16384}"]
        for u in range(4):
            for pt in range(2):
                L.append(f"ds_read_b64_tr_b16 a[{b+4*u+2*pt}:{b+4*u+2*pt+1}], v{vTR+u} offset:{sl*16384 + (16*s + 4*pt)*256}")
        return L
    a.wait_tok(stage_tok[0], lg=0); e("s_barrier")
    stamp("bar0")
    run(reads(0))
    dq = dma_list(2)
    for g in range(32):
        n, s = divmod(g, 4); b = WF + (g & 1)*16; x = X0 + 4*g
        def mm(u):
            c = "0" if g == 0 else f"v[{ACC+16*u}:{ACC+16*u+15}]"
            return f"v_mfma_f32_32x32x16_bf16 v[{ACC+16*u}:{ACC+16*u+15}], a[{b+4*u}:{b+4*u+3}], v[{x}:{x+3}], {c}"
        msum = f"v_mfma_f32_16x16x32_bf16 v[{vSUM}:{vSUM+3}], v[{vSEL}:{vSEL+3}], v[{x}:{x+3}], " + ("0" if g == 0 else f"v[{vSUM}:{vSUM+3}]")
        mcs = f"v_mfma_f32_16x16x32_bf16 v[{vCS}:{vCS+3}], a[{b}:{b+3}], v[{vSEL}:{vSEL+3}], " + ("0" if g == 0 else f"v[{vCS}:{vCS+3}]")
        sq = []
        for k in range(4):
            t = vTMP + 2*(k & 1)
            sq += [f"v_lshlrev_b32 v{t}, 16, v{x+k}", f"v_and_b32 v{t+1}, 0xffff0000, v{x+k}", f"v_fmac_f32 v{vSQ}, v{t}, v{t}", f"v_fmac_f32 v{vSQ+1}, v{t+1}, v{t+1}"]
        rd = reads(g + 1) if g < 31 else []
        first = mm(0)
        if s == 3 and n < 7:
            def first(asm, m=mm(0), n=n):
                asm.wait(lg=0); asm.e(m); asm.wait_tok(stage_tok[n+1]); asm.e("s_barrier")
            assert not dq
            if n + 3 <= 7: dq = dma_list(n + 3)
            else: dq = piece_dma(n + 3 - 8)
        take = []; nl = 0; lim = 3 if g < 3 else 2
        while dq and (nl < lim):
            it = dq.pop(0); take.append(it)
            if callable(it) or it.startswith("buffer"): nl += 1
        if g == 8:
            take += [f"v_add_u32 v1, {NONCE_K}, v{vStale}", "v_max_u32 v1, 1, v1", f"v_mov_b32 v2, s{sNd}", f"buffer_store_dword v1, v2, s[{SDBG}:{SDBG+3}], 0 offen sc1"]
        if g == 9:
            take += [f"v_lshlrev_b32 v2, 16, v{vB1}", f"v_and_b32 v1, 31, v{vL}", f"s_lshl_b32 s{sT0}, s{sWave}, 9", f"s_add_u32 s{sT0}, s{sT0}, {SCR}",
                     f"v_lshl_add_u32 v{vB1}, v1, 2, s{sT0}", f"ds_write_b32 v{vB1}, v2 offset:128"]
        if g == 31:
            take += [f"v_mov_b32 v{vNon}, 0", f"buffer_load_dword v{vNon}, v{vNon}, s[{SDBG}:{SDBG+3}], 0 offen sc1"]
        h = (len(take) + 1) // 2
        if g == 31:
            mains = [msum, mcs, first, mm(1), mm(2), mm(3)]
            gaps = [sq[0:2], sq[2:4], sq[4:10], sq[10:16], take, []]
        else:
            mains = [first, mm(1), mm(2), mm(3), msum, mcs]
            gaps = [rd[0:3] + sq[0:3], rd[3:6] + sq[3:6], rd[6:9] + sq[6:9], take[:h] + sq[9:12], sq[12:14], take[h:] + sq[14:16]]
        for m, gp in zip(mains, gaps):
            m(a) if callable(m) else e(m)
            run(gp)
        if s == 3 and n < 7: stamp(f"st{n}", 1 if n in (1, 4) else 2)
    assert not dq
    stamp("loopend")
    vRho = 36
    e("s_mov_b32 exec_lo, 0x00110011"); e("s_mov_b32 exec_hi, 0x00110011")
    e(f"ds_write_b128 v{vCSA}, v[{vCS}:{vCS+3}]")
    e("s_mov_b64 exec, -1")
    e(f"v_add_f32 v{vSQ}, v{vSQ}, v{vSQ+1}"); e(f"v_mul_f32 v1, {f32(1/512)}, v{vSUM}"); e(f"v_mov_b32 v{vSQ+1}, v{vSQ}")
    e("v_mul_f32 v2, v1, v1")
    a.wait(lg=0); e("s_barrier")
    CB = [4, 20]
    def csb_reads(hh):
        u, hf = divmod(hh, 2); cb = CB[hh & 1]
        return [f"ds_read_b128 v[{cb}:{cb+3}], v{vSA+u} offset:{64*hf}", f"ds_read_b128 v[{cb+8}:{cb+11}], v{vSA+u} offset:{128+64*hf}",
                f"ds_read_b128 v[{cb+4}:{cb+7}], v{vSA+u} offset:{64*hf+32}", f"ds_read_b128 v[{cb+12}:{cb+15}], v{vSA+u} offset:{128+64*hf+32}"]
    run(csb_reads(0))
    e(f"v_permlane32_swap_b32 v{vSQ}, v{vSQ+1}"); e(f"v_add_f32 v{vSQ}, v{vSQ}, v{vSQ+1}")
    e(f"v_fma_f32 v2, v{vSQ}, s{sT0}, -v2") if False else (e(f"v_mul_f32 v3, {f32(1/512)}, v{vSQ}"), e("v_sub_f32 v2, v3, v2"))
    e("v_max_f32 v2, 0, v2")
    e(f"v_add_f32 v3, {f32(1e-5)}, v2"); e("v_rsq_f32 v3, v3")
    e("v_mul_f32 v2, v2, v3"); e(f"v_fmaak_f32 v2, v2, v3, {f32(1e-5)}"); e("v_rsq_f32 v2, v2")
    e(f"ds_write_b32 v{vB1}, v3 offset:256")
    e(f"v_mul_f32 v{vRho}, v2, v3"); e(f"v_mul_f32 v{vRho+1}, -v1, v{vRho}")
    stamp("stats")
    T = 52
    P = lambda r, k: f"v[{r+2*k}:{r+2*k+1}]"
    for u in range(4):
        e(f"s_cmp_eq_u32 s{sTT+u}, s{sSkip}"); e(f"s_cbranch_scc1 L_skip{u}")
        for hf in range(2):
            hh = 2*u + hf; cb = CB[hh & 1]; A = ACC + 16*u + 8*hf
            V = []
            V += [f"v_pk_fma_f32 {P(T,k)}, v[{vRho}:{vRho+1}], {P(cb,k)}, {P(cb+8,k)} op_sel:[1,0,0] op_sel_hi:[1,1,1]" for k in range(4)]
            V += [f"v_pk_fma_f32 {P(A,k)}, {P(A,k)}, v[{vRho}:{vRho+1}], {P(T,k)} op_sel_hi:[1,0,1]" for k in range(4)]
            V += [f"v_pk_mul_f32 {P(T,k)}, {P(A,k)}, {P(A,k)}" for k in range(4)]
            V += [f"v_pk_fma_f32 {P(T,k)}, {P(T,k)}, s[{sGK}:{sGK+1}], s[{sGK}:{sGK+1}] op_sel:[0,0,1] op_sel_hi:[1,0,1]" for k in range(4)]
            V += [f"v_pk_mul_f32 {P(T,k)}, {P(A,k)}, {P(T,k)}" for k in range(4)]
            V += [f"v_exp_f32 v{T+k}, v{T+k}" for k in range(8)]
            V += [f"v_pk_add_f32 {P(T,k)}, {P(T,k)}, 1.0 op_sel_hi:[1,0]" for k in range(4)]
            V += [f"v_rcp_f32 v{T+k}, v{T+k}" for k in range(8)]
            V += [f"v_pk_mul_f32 {P(T,k)}, {P(A,k)}, {P(T,k)}" for k in range(4)]
            V += [f"v_cvt_pk_bf16_f32 v{A+k}, v{T+2*k}, v{T+2*k+1}" for k in range(4)]
            run(V[:4])
            if hh < 7: run(csb_reads(hh + 1))
            run(V[4:])
            last_store = e(f"buffer_store_dwordx4 v[{A}:{A+3}], v{vHS}, s[{SWS}:{SWS+3}], s{sHst+u} offen offset:{1024*hf}{HS}")
        if u < 3:
            e(f"s_branch L_next{u}")
            a.label(f"L_skip{u}")
            snap = a.snapshot()
            a.force_wait(lg=0); run(csb_reads(2*u + 2))
            a.label(f"L_next{u}"); a.restore(snap)
        else:
            a.label(f"L_skip{u}")
        stamp(f"g{u}", 2)
    del a.vm[-4:-2]
    a.force_wait(lg=0)
    stamp("gelu")
    vFlagA, vFlagV = 48, 49
    def nonce_get(asm):
        e(f"v_readfirstlane_b32 s{sNonce}, v{vNon}")
        e(f"s_cmp_lg_u32 s{sNonce}, 0"); e("s_cbranch_scc1 L_have_nonce")
        snap = a.snapshot()
        e(f"s_mov_b32 s{sCnt}, 0"); e("v_mov_b32 v1, 0")
        a.label("L_nonce_poll")
        a.raw(f"    buffer_load_dword v{vNon}, v1, s[{SDBG}:{SDBG+3}], 0 offen sc1")
        a.raw("    s_waitcnt vmcnt(0)")
        a.raw(f"    v_readfirstlane_b32 s{sNonce}, v{vNon}")
        a.raw(f"    s_add_u32 s{sCnt}, s{sCnt}, 1"); a.raw(f"    s_cmp_gt_u32 s{sCnt}, 0x80000"); a.raw("    s_cbranch_scc1 L_end")
        a.raw(f"    s_cmp_eq_u32 s{sNonce}, 0"); a.raw("    s_cbranch_scc1 L_nonce_poll")
        a.label("L_have_nonce"); a.restore(snap)
        e(f"s_lshl4_add_u32 s{sT0}, s{sS2}, s{sJ}"); e(f"s_lshl_b32 s{sT0}, s{sT0}, 6"); e(f"s_add_u32 s{sT0}, s{sT0}, {FH_OFF}")
        e(f"v_mov_b32 v{vFlagA}, s{sT0}"); e(f"v_mov_b32 v{vFlagV}, s{sNonce}")
    def hflag(asm):
        asm.wait_tok(last_store)
        asm.e("s_mov_b64 exec, 1")
        asm.e(f"buffer_store_dword v{vFlagV}, v{vFlagA}, s[{SWS}:{SWS+3}], 0 offen{FL}")
        asm.e("s_mov_b64 exec, -1")
        stamp("hflag")
    nonce_get(a)
    e(f"s_mov_b32 s{sZf}, {OOB}")
    e(f"s_cmp_ge_u32 s{sRo}, 2"); e("s_cbranch_scc1 L_dft")
    snap = a.snapshot()
    run(piece_tr(0)[:9]); run(piece_dma(2)); run(piece_tr(0)[9:]); run(piece_tr(1)); a.wait(lg=15); a.wait(lg=0)
    run(piece_dma(3)); hflag(a); run(piece_dma(4))
    run(piece_tr(2)); a.wait(lg=0); run(piece_dma(5))
    run(piece_tr(3)); a.wait(lg=0); run(piece_dma(6))
    run(piece_tr(4))
    a.force_wait(lg=0)
    e("s_branch L_join")
    a.label("L_dft"); a.restore(snap)
    FC, FN = 20, 28
    e(f"v_lshlrev_b32 v3, 4, v{vL}"); e(f"v_add_u32 v3, {MP}, v3")
    def mread(sg):
        b = WF + (sg & 3)*8
        return [f"ds_read_b128 a[{b}:{b+3}], v3 offset:{sg*1024}", f"ds_read_b128 a[{b+4}:{b+7}], v3 offset:{16384+sg*1024}"]
    run(mread(0)); run(mread(1))
    floads = [f"v_and_b32 v1, 31, v{vL}", "v_lshlrev_b32 v1, 14, v1", f"v_lshrrev_b32 v2, 5, v{vL}", "v_lshl_add_u32 v1, v2, 3, v1"]
    for q in range(2):
        for pt in range(2):
            floads.append(f"buffer_load_dwordx2 v[{FC+4*q+2*pt}:{FC+4*q+2*pt+1}], v1, s[{SHRE}:{SHRE+3}], 0 offen offset:{32*q+16*pt}")
            floads.append(f"buffer_load_dwordx2 v[{FN+4*q+2*pt}:{FN+4*q+2*pt+1}], v1, s[{SHIM}:{SHIM+3}], 0 offen offset:{32*q+16*pt}")
    CL, CH, SL, SH = 64, 80, 96, 112
    sched = {0: piece_dma(2), 1: piece_tr(0), 2: piece_tr(1), 3: [LG0] + piece_dma(3), 4: piece_dma(4), 5: floads,
             opt.get("cdflag", 7): [hflag], 8: piece_tr(2), 9: [LG0] + piece_dma(5), 11: piece_tr(3), 12: [LG0] + piece_dma(6), 14: piece_tr(4)}
    for sg in range(16):
        b = WF + (sg & 3)*8
        lo, hi_ = X0 + 4*sg, X0 + 4*(sg + 16)
        def mf(acc, x, bb): return f"v_mfma_f32_32x32x16_bf16 v[{acc}:{acc+15}], v[{x}:{x+3}], a[{bb}:{bb+3}], " + ("0" if sg == 0 else f"v[{acc}:{acc+15}]")
        side = sched.get(sg, []) + (mread(sg + 2) if sg < 14 else [])
        if sg == 15:
            side += [f"v_lshrrev_b32 v1, 5, v{vL}", "v_lshlrev_b32 v1, 4, v1", f"s_lshl_b32 s{sT0}, s{sWave}, 9", f"s_add_u32 s{sT0}, s{sT0}, {SCR+256}", f"v_add_u32 v1, s{sT0}, v1"]
            side += [f"ds_read_b128 v[{4+4*gq}:{7+4*gq}], v1 offset:{32*gq}" for gq in range(4)]
            side += [f"v_and_b32 v1, 1, v{vL}", "v_lshlrev_b32 v1, 31, v1", "v_or_b32 v2, 0x3f800000, v1"]
        interleave(a, [mf(CL, lo, b), mf(CH, hi_, b), mf(SL, lo, b+4), mf(SH, hi_, b+4)], side)
    stamp("dftend", 2)
    a.wait(lg=0); e("s_barrier")
    AB, BB, NA = 112, 120, 52
    for k in range(8): e(f"v_pk_fma_f32 {P(CL,k)}, {P(CH,k)}, v[2:3], {P(CL,k)} op_sel_hi:[1,0,1]")
    for k in range(8): e(f"v_pk_fma_f32 {P(SL,k)}, {P(SH,k)}, v[2:3], {P(SL,k)} op_sel_hi:[1,0,1]")
    for k in range(8): e(f"v_pk_mul_f32 {P(CL,k)}, {P(CL,k)}, {P(4,k)}")
    for k in range(8): e(f"v_pk_mul_f32 {P(SL,k)}, {P(SL,k)}, {P(4,k)}")
    for k in range(8): e(f"v_cvt_pk_bf16_f32 v{AB+k}, v{CL+2*k}, v{CL+2*k+1}")
    for k in range(8): e(f"v_cvt_pk_bf16_f32 v{BB+k}, v{SL+2*k}, v{SL+2*k+1}")
    ZR, ZI = 64, 80
    def zm(acc, f, o, first): return f"v_mfma_f32_32x32x16_bf16 v[{acc}:{acc+15}], v[{f}:{f+3}], v[{o}:{o+3}], " + ("0" if first else f"v[{acc}:{acc+15}]")
    zmf = [zm(ZR, FC, AB, True), zm(ZR, FN, BB, False), zm(ZR, FC+4, AB+4, False), zm(ZR, FN+4, BB+4, False),
           zm(ZI, FC, BB, True), zm(ZI, FC+4, BB+4, False), zm(ZI, FN, NA, False), zm(ZI, FN+4, NA+4, False)]
    side = [f"v_xor_b32 v{NA+k}, 0x80008000, v{AB+k}" for k in range(8)]
    side += [f"v_lshrrev_b32 v4, 5, v{vL}", "v_lshlrev_b32 v1, 11, v4", f"v_and_b32 v2, 31, v{vL}", "v_lshl_add_u32 v1, v2, 4, v1",
             f"s_lshl_b32 s3, s{sWave}, 2", f"s_add_u32 s3, s3, {MP}", "v_add_u32 v1, s3, v1",
             "v_lshlrev_b32 v4, 16, v4", "v_lshl_add_u32 v4, v2, 4, v4", f"v_add_u32 v3, s{sW4K}, v3",
             f"s_lshl_b32 s3, s{sWave}, 19", f"s_lshl_b32 s{sT0}, s{sI}, 12", f"s_add_u32 s3, s3, s{sT0}",
             f"s_lshl_b32 s{sT0}, s{sM}, 9", f"s_add_u32 s3, s3, s{sT0}", f"s_add_u32 s3, s3, {Z_OFF}",
             f"s_lshl2_add_u32 s{sT0}, s{sM}, s{sWave}", f"s_lshl4_add_u32 s{sT0}, s{sT0}, s{sI}", f"s_lshl_b32 s{sT0}, s{sT0}, 6", f"s_add_u32 s{sZf}, s{sT0}, {FZ_OFF}"]
    interleave(a, zmf, side, per=[4, 4, 4, 4, 4, 4, 4, 0])
    for r in range(16):
        e(f"v_cvt_pk_bf16_f32 v{96+r}, v{ZR+r}, v{ZI+r}")
        e(f"ds_write_b32 v1, v{96+r} offset:{(8*(r>>2) + (r&3))*512}")
    stamp("zw", 2)
    a.wait(lg=0); e("s_barrier")
    for k in range(4): e(f"ds_read_b128 v[{64+4*k}:{67+4*k}], v3 offset:{k*1024}")
    for k in range(4):
        e(f"buffer_store_dwordx4 v[{64+4*k}:{67+4*k}], v4, s[{SWS}:{SWS+3}], s3 offen{HS}")
        if k < 3: e("s_add_u32 s3, s3, 0x20000")
    a.force_wait(lg=0)
    e("s_nop 1")
    a.label("L_join")
    a.vm = [(set(), 10**6 + k) for k in range(20)]; a.ntok = 2*10**6; a.lg = []; a.hist = []
    stamp("join")
    sCt0, sTt0, sMir, sT1p = 9, 10, 11, 12
    e(f"s_and_b32 s{sCt0}, s{sWave}, 1"); e(f"s_lshr_b32 s{sTt0}, s{sWave}, 1")
    vPA = 50
    e(f"v_bfe_u32 v1, v{vL}, 2, 1"); e(f"v_and_b32 v2, 3, v{vL}"); e("v_lshl_add_u32 v1, v1, 9, v2")
    e(f"s_lshl2_add_u32 s3, s{sT1}, s{sWave}"); e("s_lshl_b32 s3, s3, 8"); e(f"s_add_u32 s3, s3, {FH_OFF}")
    e(f"v_lshl_add_u32 v{vPA}, v1, 6, s3")
    e(f"buffer_load_dword v51, v{vPA}, s[{SWS}:{SWS+3}], 0 offen{PL}")
    sCol = 13
    e(f"s_lshl1_add_u32 s{sCol}, s{sC}, s{sCt0}"); e(f"s_lshl_b32 s{sCol}, s{sCol}, 5")
    e(f"v_lshrrev_b32 v3, 5, v{vL}"); e("v_lshlrev_b32 v1, 3, v3"); e(f"s_lshl_b32 s3, s{sCol}, 1")
    for gq in range(4): e(f"buffer_load_dwordx2 v[{52+2*gq}:{53+2*gq}], v1, s[{SB2}:{SB2+3}], s3 offen offset:{16*gq}")
    vH = 36
    e(f"s_lshl_b32 s3, s{sTt0}, 5"); e(f"s_add_u32 s{sT0}, s3, s{sT1}")
    e(f"s_xor_b32 s{sT1_}, s{sT0}, 32")
    e(f"s_mul_i32 s3, s{sWave}, {28*1024}"); e(f"v_lshl_add_u32 v1, v{vL}, 4, s3")
    e(f"s_mul_i32 s3, s{sT0}, {112*1024}"); e(f"v_add_u32 v{vH}, s3, v1")
    e(f"s_mul_i32 s3, s{sT1_}, {112*1024}"); e(f"v_add_u32 v{vH+1}, s3, v1")
    vTok, vOut, vBase, vA0, vZA, vZP = 38, 39, 40, 41, 42, 43
    e(f"v_and_b32 v2, 31, v{vL}"); e(f"v_lshl_add_u32 v{vTok}, v2, 6, s{sT0}")
    e(f"s_lshl_b32 s3, s{sCol}, 1"); e(f"v_lshl_add_u32 v{vOut}, v{vTok}, 10, s3")
    e(f"s_cmp_ge_u32 s{sC}, 4"); e(f"s_cselect_b32 s{sMir}, 1, 0")
    e(f"s_mov_b32 s3, {f32(-1/2048)}"); e(f"s_cselect_b32 s3, {f32(1/2048)}, s3")
    e(f"v_cvt_f32_u32 v{vBase}, v{vTok}"); e(f"v_mul_f32 v{vBase}, s3, v{vBase}")
    e("v_lshlrev_b32 v1, 1, v3"); e("v_cvt_f32_u32 v1, v1"); e(f"v_mul_f32 v{vA0}, v1, v{vBase}")
    e(f"s_sub_u32 s3, 32, s{sT1}"); e("s_and_b32 s3, s3, 31"); e(f"s_cmp_eq_u32 s{sMir}, 1"); e(f"s_cselect_b32 s{sT1p}, s3, s{sT1}")
    e(f"v_add_u32 v1, s{sCol}, v2")
    e("v_sub_u32 v46, 0x200, v1"); e("v_and_b32 v46, 0xff, v46")
    e(f"s_cselect_b64 vcc, -1, 0"); e("s_nop 0"); e("v_cndmask_b32 v46, v1, v46, vcc")
    e(f"s_lshl_b32 s3, s{sT1p}, 16"); e(f"s_add_u32 s3, s3, {Z_OFF}")
    e("v_lshlrev_b32 v47, 12, v3"); e("v_lshl_add_u32 v47, v46, 4, v47"); e("v_add_u32 v47, s3, v47")
    e(f"v_mov_b32 v60, {OOB}"); e("v_cmp_eq_u32 vcc, 0, v1"); e(f"v_cndmask_b32 v{vZA}, v47, v60, vcc")
    e("v_lshrrev_b32 v46, 5, v46"); e(f"v_readlane_b32 s3, v46, 0"); e(f"v_readlane_b32 s{sT0}, v46, 31")
    e(f"v_mov_b32 v46, s3"); e(f"v_mov_b32 v47, s{sT0}"); e(f"v_and_b32 v60, 16, v{vL}"); e("v_cmp_eq_u32 vcc, 0, v60"); e("v_cndmask_b32 v46, v46, v47, vcc")
    e(f"s_lshr_b32 s3, s{sT1p}, 3"); e("v_lshl_add_u32 v46, v46, 2, s3"); e(f"v_and_b32 v47, 15, v{vL}"); e("v_lshl_add_u32 v46, v46, 4, v47")
    e("v_lshlrev_b32 v46, 6, v46"); e(f"v_add_u32 v{vZP}, {FZ_OFF}, v46")
    e(f"v_mov_b32 v46, s{sZf}")
    a.force_wait(vm=0)
    e("s_mov_b64 exec, 1")
    e(f"buffer_store_dword v{vFlagV}, v46, s[{SWS}:{SWS+3}], 0 offen{FL}")
    e("s_mov_b64 exec, -1")
    stamp("poll1", 2)
    poll_loop("L_h", 51, vPA, SWS)
    stamp("hready")
    RING = 128; RD = opt.get("ring", 8)
    def hload(st):
        p, s4 = divmod(st, 4); r = RING + (st % RD)*8
        return [f"buffer_load_dwordx4 v[{r+4*b}:{r+4*b+3}], v{vH+b}, s[{SWS}:{SWS+3}], s{sPc+p} offen offset:{s4*1024}{HL}" for b in range(2)]
    for st in range(RD): run(hload(st))
    stamp("burst", 2)
    run(piece_tr(5)[1:]); run(piece_tr(6)[1:])
    for gq in range(4):
        for k in range(2):
            e(f"v_lshlrev_b32 v{ACC+4*gq+2*k}, 16, v{52+2*gq+k}"); e(f"v_and_b32 v{ACC+4*gq+2*k+1}, 0xffff0000, v{52+2*gq+k}")
    a.wait(lg=0); e("s_barrier")
    MX = 4
    genq = []
    for q in range(8):
        for w_ in range(4):
            K = 4*q + (w_ & 1) + 32*(w_ >> 1); t = 44 + 3*(w_ & 1)
            genq.append([f"v_fmamk_f32 v{t}, v{vBase}, {f32(K)}, v{vA0}", f"v_cos_f32 v{t+1}, v{t}", f"v_sin_f32 v{t+2}, v{t}", f"v_cvt_pk_bf16_f32 v{MX+4*q+w_}, v{t+1}, v{t+2}"])
    gen_flat = []
    for k in range(0, 32, 2):
        A_, B_ = genq[k], genq[k+1]
        gen_flat += [A_[0], B_[0], A_[1], A_[2], B_[1], B_[2], A_[3], B_[3]]
    ZF = 208; XF = 240; SACC = 192; XU = 44
    assert RING + RD*8 <= SACC
    ZSTEP = opt.get("zstep", 8)
    for st in range(28):
        r = RING + (st % RD)*8
        def mf(sig):
            aa, bb = sig & 1, sig >> 1
            w = (st*2 + aa)*4; acc = ACC + 16*sig
            c = "0" if (st == 0 and sig) else f"v[{acc}:{acc+15}]"
            return f"v_mfma_f32_32x32x16_bf16 v[{acc}:{acc+15}], a[{w}:{w+3}], v[{r+4*bb}:{r+4*bb+3}], {c}"
        side = gen_flat[:8]; gen_flat = gen_flat[8:]
        post = hload(st + RD) if st + RD < 28 else []
        if st == ZSTEP: post.append(f"buffer_load_dword v51, v{vZP}, s[{SWS}:{SWS+3}], 0 offen{PL}")
        if st == 2:
            post += [f"v_lshrrev_b32 v1, 5, v{vL}", f"v_lshl_add_u32 v1, v1, 3, v{vOut}"]
            post += [f"buffer_load_dwordx2 v[{XF+2*gq}:{XF+2*gq+1}], v1, s[{SX}:{SX+3}], 0 offen offset:{16*gq}" for gq in range(4)]
        if st >= 20:
            k0 = (st - 20)*2
            side += [(f"v_lshlrev_b32 v{XU+k}, 16, v{XF+k//2}") if k % 2 == 0 else f"v_and_b32 v{XU+k}, 0xffff0000, v{XF+k//2}" for k in (k0, k0+1)]
        interleave(a, [mf(0), mf(1), mf(2), mf(3)], side)
        run(post)
        if st % 4 == 0: stamp(f"p{st}", 2)
        if st == ZSTEP + RD:
            assert 16 <= st < 20
            poll_loop("L_z", 51, vZP, SWS)
            stamp("zready", 2)
            for q in range(8):
                e(f"s_mov_b32 s3, {q*8192}")
                e(f"buffer_load_dwordx4 v[{ZF+4*q}:{ZF+4*q+3}], v{vZA}, s[{SWS}:{SWS+3}], s3 offen{HL}")
    assert not gen_flat
    stamp("p2end")
    e(f"v_lshlrev_b32 v1, 4, v{vL}"); e(f"v_add_u32 v1, {RED}, v1")
    wr = []
    for sig in range(1, 4):
        ad = f"v{1+sig}" if sig < 3 else "v60"
        e(f"s_xor_b32 s3, s{sWave}, {sig}"); e("s_mul_i32 s3, s3, 12288"); e(f"v_add_u32 {ad}, s3, v1")
        wr += [f"ds_write_b128 {ad}, v[{ACC+16*sig+4*qd}:{ACC+16*sig+4*qd+3}] offset:{(sig-1)*4096+qd*1024}" for qd in range(4)]
    smf = [f"v_mfma_f32_32x32x16_bf16 v[{SACC}:{SACC+15}], v[{ZF+4*q}:{ZF+4*q+3}], v[{MX+4*q}:{MX+4*q+3}], " + ("0" if q == 0 else f"v[{SACC}:{SACC+15}]") for q in range(8)]
    interleave(a, smf, wr)
    e(f"s_mul_i32 s3, s{sWave}, 12288"); e("v_add_u32 v1, s3, v1")
    e(f"s_mov_b32 s{sGK}, {f32(-math.log2(math.e))}")
    e(f"v_lshrrev_b32 v2, 5, v{vL}"); e(f"v_lshl_add_u32 v{vOut}, v2, 4, v{vOut}")
    stamp("redw", 2)
    a.wait(lg=0); e("s_barrier")
    stamp("redbar", 2)
    order = [sig*4 + qd for qd in range(4) for sig in range(3)]
    for k in order: e(f"ds_read_b128 v[{ACC+16+4*k}:{ACC+19+4*k}], v1 offset:{k*1024}")
    T = 4
    for hf in range(2):
        K = range(4*hf, 4*hf + 4); K2 = range(8*hf, 8*hf + 8)
        for sig in range(1, 4):
            for k in K: e(f"v_pk_add_f32 {P(ACC,k)}, {P(ACC,k)}, {P(ACC+16*sig,k)}")
        for k in K: e(f"v_pk_mul_f32 {P(T,k)}, {P(ACC,k)}, s[{sGK}:{sGK+1}] op_sel_hi:[1,0]")
        for k in K2: e(f"v_exp_f32 v{T+k}, v{T+k}")
        for k in K: e(f"v_pk_add_f32 {P(T,k)}, {P(T,k)}, 1.0 op_sel_hi:[1,0]")
        for k in K2: e(f"v_rcp_f32 v{T+k}, v{T+k}")
        for k in K: e(f"v_pk_mul_f32 {P(T,k)}, {P(T,k)}, {P(ACC,k)}")
        for k in K: e(f"v_pk_fma_f32 {P(T,k)}, {P(T,k)}, {P(SACC,k)}, {P(XU,k)}")
        for k in K: e(f"v_cvt_pk_bf16_f32 v{20+k}, v{T+2*k}, v{T+2*k+1}")
        q = hf
        e(f"v_permlane32_swap_b32 v{20+4*q}, v{22+4*q}"); e(f"v_permlane32_swap_b32 v{21+4*q}, v{23+4*q}")
        e(f"buffer_store_dwordx4 v[{20+4*q}:{23+4*q}], v{vOut}, s[{SOUT}:{SOUT+3}], 0 offen offset:{32*q}" + opt.get("outflag", ""))
    if ST:
        stamp("epi"); a.force_wait(vm=0); stamp("end")
        a.raw("    s_memrealtime s[100:101]"); a.raw("    s_waitcnt lgkmcnt(0)"); a.raw("    v_writelane_b32 v62, s100, 61")
        e(f"s_lshl_b32 s3, s2, 2"); e(f"s_add_u32 s3, s3, s{sWave}"); e("s_lshl_b32 s3, s3, 8"); e(f"s_add_u32 s3, s3, 0xE00000")
        e(f"v_lshlrev_b32 v1, 2, v{vL}")
        e(f"buffer_store_dword v62, v1, s[{SWS}:{SWS+3}], s3 offen")
    a.label("L_end")
    a.raw("    s_endpgm")
    a.names = names
    return a

HEAD = open("cdna_kernels/%s.s.ref" % NAME).read().split("; Override launch geometry")[0]
def build(opt):
    a = gen(opt)
    s = HEAD + f"; @launch grid=(256,1,1) block=(256,1,1) lds={LDS_BYTES}\n"
    s += f""".amdgcn_target "amdgcn-amd-amdhsa--gfx950"
.text
.globl {NAME}_kernel
.p2align 8
.type {NAME}_kernel,@function
"""
    s += "; stamps: " + " ".join(a.names) + "\n" if a.names else ""
    s += a.text()
    s += f""".section .rodata,"a"
.p2align 6
.amdhsa_kernel {NAME}_kernel
  .amdhsa_next_free_vgpr 512
  .amdhsa_next_free_sgpr 102
  .amdhsa_accum_offset 256
  .amdhsa_group_segment_fixed_size 0
  .amdhsa_kernarg_size 104
  .amdhsa_user_sgpr_count 2
  .amdhsa_user_sgpr_kernarg_segment_ptr 1
  .amdhsa_system_sgpr_workgroup_id_x 1
.end_amdhsa_kernel
"""
    return s, a

if __name__ == "__main__":
    opt = {}
    out = sys.argv[1]
    for kv in sys.argv[2:]:
        k, v = kv.split("=")
        opt[k] = int(v) if v.lstrip("-").isdigit() else v.replace("_", " ")
    s, a = build(opt)
    open(out, "w").write(s)
    print("instrs", a.count, "nop states", a.nops)
```

```python
import sys, struct, math
from asmlib import *

NAME = "recurrent_scan__spectral_fnet__mixer_channel_mlp__prompt"
def f32(x): return "0x%08x" % struct.unpack("<I", struct.pack("<f", x))[0]

H_OFF, FH_OFF, FZ_OFF, Z_OFF, WS_SIZE = 0, 0x700000, 0x710000, 0x800000, 0x1000000
OOB = 0x40000000
NONCE_K = 0x9E3779B9
XS, WSL, SCR, MP = 0, 49152, 98304, 131072
RED = 98304
LDS_BYTES = 163840
SX, SW1, SW2, SWS, SDBG, SOUT, SB1, SB2, SHRE, SHIM = 32, 36, 40, 44, 48, 52, 56, 60, 64, 68
sWave, sI, sJ, sRo, sWcol, sT1, sC, sW4K = 72, 73, 74, 75, 76, 77, 78, 79
sGK = 80
sXo, sWo = 82, 90
sT0, sT1_, sT2, sT3 = 98, 99, 100, 101
sHst = 16
sPc = 20
sW2b = 27
sW2l = 28
sNonce = 29
sM = 30
sKc0 = 31
sS2 = 4
sCnt = 5
sZf = 6
sSkip = 7
sTT = 9
sNd = 13
vL = 0
vXD, vWD, vXR, vTR = 4, 8, 12, 16
vSEL, vSUM, vCS, vSQ, vTMP = 20, 24, 28, 32, 34
vB1, vStale = 38, 39
vW2D, vW2T = 40, 44
vHS, vNon = 46, 47
vSA = 48
vCSA = 60
vPF = 63
ACC, X0 = 64, 128
WF = 224

def gen(opt):
    a = Asm(); e = a.e
    ST = opt.get("stamps", 0)
    names = []
    def stamp(name="", lvl=1):
        if ST >= lvl:
            if name in names: k = names.index(name)
            else: names.append(name); k = len(names) - 1
            assert k < 60
            a.raw(f"    s_memtime s[{sT2}:{sT3}]"); a.raw("    s_waitcnt lgkmcnt(0)"); a.lg = []; a.smem_pending = set()
            a.raw(f"    v_writelane_b32 v62, s{sT2}, {k}")
    def run(L):
        for x in L: x(a) if callable(x) else e(x)
    FL = opt.get("flagst", " sc1"); PL = opt.get("poll", " sc1"); HL = opt.get("hld", " sc1"); HS = opt.get("hst", " sc1")
    def poll_loop(lbl, dst, addr, srd):
        e(f"v_cmp_eq_u32 vcc, s{sNonce}, v{dst}"); e("s_cmp_eq_u64 vcc, exec"); e(f"s_cbranch_scc1 {lbl}_ready")
        snap = a.snapshot()
        e(f"s_mov_b32 s{sCnt}, 0")
        a.label(f"{lbl}_poll")
        a.raw(f"    buffer_load_dword v{dst}, v{addr}, s[{srd}:{srd+3}], 0 offen{PL}")
        a.raw(f"    s_add_u32 s{sCnt}, s{sCnt}, 1"); a.raw(f"    s_cmp_gt_u32 s{sCnt}, 0x80000"); a.raw("    s_cbranch_scc1 L_end")
        a.raw("    s_waitcnt vmcnt(0)")
        a.raw(f"    v_cmp_eq_u32 vcc, s{sNonce}, v{dst}"); a.raw("    s_nop 2"); a.raw("    s_cmp_eq_u64 vcc, exec"); a.raw(f"    s_cbranch_scc0 {lbl}_poll")
        a.label(f"{lbl}_ready"); a.restore(snap)

    a.raw(f"{NAME}_kernel:")
    e("s_load_dwordx16 s[16:31], s[0:1], 0")
    e("s_getpc_b64 s[14:15]")
    a.label("L_pc")
    e("s_cmp_ge_u32 s2, 256"); e("s_cbranch_scc1 L_end")
    e("v_lshlrev_b32 v1, 7, v0")
    e("v_min_u32 v1, L_end-L_pc, v1")
    e(f"global_load_dword v{vPF}, v1, s[14:15]")
    e("s_load_dwordx8 s[4:11], s[0:1], 64")
    e("s_load_dwordx2 s[12:13], s[0:1], 96")
    if ST: e("s_memtime s[94:95]"); e("s_memrealtime s[96:97]")
    if opt.get("padrt"): a.raw("    s_memrealtime s[100:101]")
    if opt.get("padcy"): a.raw("    s_memtime s[100:101]")
    e("v_lshrrev_b32 v1, 6, v0")
    e(f"v_and_b32 v{vL}, 63, v0")
    e(f"v_readfirstlane_b32 s{sWave}, v1")
    R = opt.get("rot", 8)
    e("s_and_b32 s3, s2, 7")
    e(f"s_lshr_b32 s{sT1}, s2, 6")
    e(f"s_bfe_u32 s{sC}, s2, 0x30003")
    e(f"s_lshr_b32 s{sI}, s3, 1"); e(f"s_lshl2_add_u32 s{sI}, s{sI}, s{sT1}")
    e(f"s_and_b32 s{sJ}, s3, 1"); e(f"s_lshl3_add_u32 s{sJ}, s{sJ}, s{sC}")
    if R == 8: e(f"s_lshl1_add_u32 s81, s{sT1}, s{sC}")
    elif R == 4: e(f"s_add_u32 s81, s{sT1}, s{sC}"); e("s_lshl_b32 s81, s81, 1")
    elif R == 2: e(f"s_add_u32 s81, s{sT1}, s{sC}"); e("s_lshl_b32 s81, s81, 2")
    else: e("s_mov_b32 s81, 0")
    if opt.get("rotx", 0): e(f"s_mul_i32 s80, s3, {opt['rotx']}"); e("s_add_u32 s81, s81, s80")
    e(f"s_and_b32 s{sRo}, s{sJ}, 3")
    e(f"s_lshr_b32 s{sT0}, s{sJ}, 2"); e(f"s_mul_i32 s{sWcol}, s{sT0}, 896")
    e(f"s_mul_i32 s{sT0}, s{sRo}, 0xe0"); e(f"s_add_u32 s{sT0}, s{sT0}, 64"); e(f"s_and_b32 s{sT0}, s{sT0}, 0xffffff80")
    e(f"s_add_u32 s{sWcol}, s{sWcol}, s{sT0}")
    e(f"s_lshl_b32 s{sW4K}, s{sWave}, 12")
    def soff(n):
        return [f"s_add_u32 s{sT0}, s81, {n}", f"s_and_b32 s{sT0}, s{sT0}, 7", f"s_lshl_b32 s{sXo+n}, s{sT0}, 7", f"s_mul_i32 s{sWo+n}, s{sT0}, {64*3584}"]
    run(soff(0))
    e(f"s_mul_i32 s{sT0}, s{sWave}, 0x11"); e(f"s_and_b32 s{sT0}, s{sT0}, 0x21"); e(f"s_lshl1_add_u32 s14, s{sI}, s{sT0}")
    e(f"v_lshrrev_b32 v1, 3, v{vL}"); e("v_lshlrev_b32 v1, 16, v1")
    e(f"s_lshl_b32 s{sT0}, s14, 10"); e(f"v_add_u32 v1, s{sT0}, v1")
    e(f"v_lshrrev_b32 v2, 4, v{vL}")
    e(f"v_and_b32 v3, 7, v{vL}"); e("v_xor_b32 v3, v3, v2")
    e(f"v_lshl_add_u32 v{vXD}, v3, 4, v1")
    e(f"v_xor_b32 v3, 64, v{vXD}")
    e(f"v_add_u32 v{vXD+1}, {8*65536-1024}, v3")
    e(f"v_add_u32 v{vXD+2}, {16*65536-2048}, v{vXD}")
    e(f"v_add_u32 v{vXD+3}, {24*65536-3072}, v3")
    e(f"v_lshl_add_u32 v1, s{sWave}, 4, v2"); e("v_mul_u32_u24 v1, 0xe00, v1")
    e(f"v_and_b32 v3, 15, v{vL}"); e("v_lshlrev_b32 v2, 2, v2"); e("v_xor_b32 v3, v3, v2")
    e(f"v_lshl_add_u32 v1, v3, 4, v1"); e(f"v_add_u32 v{vWD}, s{sWcol}, v1")
    for q in range(1, 4): e(f"v_add_u32 v{vWD+q}, {q*(4*3584-1024)}, v{vWD}")
    for srd, n in ((SX, 2097152), (SW1, 1835008)):
        e(f"s_mov_b32 s{srd+2}, {n}"); e(f"s_mov_b32 s{srd+3}, 0x20000")
    e(f"s_mov_b32 m0, s{sW4K}")
    a.wait(lg=0)
    e(f"s_mov_b64 s[{SX}:{SX+1}], s[16:17]"); e(f"s_mov_b64 s[{SW1}:{SW1+1}], s[28:29]")
    stage_tok = {}
    def dma_list(n):
        sl = n % 3; L = []
        L.append(f"s_add_u32 m0, s{sW4K}, {XS + sl*16384}")
        for q in range(4): L.append(f"buffer_load_dwordx4 v{vXD+q}, s[{SX}:{SX+3}], s{sXo+n} offen offset:{q*1024} lds")
        L.append(f"s_add_u32 m0, s{sW4K}, {WSL + sl*16384}")
        for q in range(3): L.append(f"buffer_load_dwordx4 v{vWD+q}, s[{SW1}:{SW1+3}], s{sWo+n} offen offset:{q*1024} lds")
        def last(asm, n=n): stage_tok[n] = asm.e(f"buffer_load_dwordx4 v{vWD+3}, s[{SW1}:{SW1+3}], s{sWo+n} offen offset:3072 lds")
        L.append(last)
        return L
    run(dma_list(0)[1:])
    run(soff(1))
    d1 = dma_list(1)
    run(d1[:5])
    if ST:
        e("v_mov_b32 v62, 0"); a.raw("    v_writelane_b32 v62, s94, 62"); a.raw("    v_writelane_b32 v62, s96, 63")
    stamp("dma0")
    for srd, p, n in ((SWS, 12, WS_SIZE), (SB1, 30, 3584), (SW2, 4, 1835008), (SDBG, 10, 256), (SOUT, 8, 2097152), (SB2, 6, 1024), (SHRE, 22, 524288), (SHIM, 24, 524288)):
        e(f"s_mov_b64 s[{srd}:{srd+1}], s[{p}:{p+1}]"); e(f"s_mov_b32 s{srd+2}, {n}"); e(f"s_mov_b32 s{srd+3}, 0x20000")
    e(f"s_mov_b32 s{sS2}, s14")
    e(f"s_or_b32 s{sT0}, s{sI}, s{sJ}"); e(f"s_or_b32 s{sT0}, s{sT0}, s{sWave}"); e(f"s_cmp_eq_u32 s{sT0}, 0")
    e(f"s_cselect_b32 s{sNd}, 0, {OOB}")
    e(f"v_mov_b32 v1, s{sNd}"); e(f"s_mov_b32 s{sT0}, {FH_OFF}")
    e(f"buffer_load_dword v{vStale}, v1, s[{SWS}:{SWS+3}], s{sT0} offen sc1")
    e(f"v_and_b32 v1, 31, v{vL}")
    e(f"s_lshl_b32 s{sT0}, s{sWave}, 6"); e(f"s_add_u32 s{sT0}, s{sT0}, s{sWcol}")
    e("v_lshlrev_b32 v2, 1, v1")
    e(f"buffer_load_ushort v{vB1}, v2, s[{SB1}:{SB1+3}], s{sT0} offen")
    if opt.get("touch", 1):
        e(f"v_and_b32 v2, 7, v{vL}"); e("v_lshlrev_b32 v2, 21, v2"); e("v_min_u32 v2, 0x800000, v2"); e("v_add_u32 v2, 0x1fff80, v2")
        e(f"buffer_load_dword v61, v2, s[{SWS}:{SWS+3}], 0 offen sc1")
        e("v_mov_b32 v2, 0")
        for k, srd in enumerate((SW2, SOUT, SB2, SHRE, SHIM, SDBG)): e(f"buffer_load_dword v{52+k}, v2, s[{srd}:{srd+3}], 0 offen sc1")
    e(f"s_lshl_b32 s80, s{sT1}, 1")
    e(f"s_lshl2_add_u32 s{sT1}, s3, s{sT1}")
    for n in range(2, 8): run(soff(n))
    e(f"s_and_b32 s{sKc0}, s81, 7")
    for p in range(7):
        e(f"s_add_u32 s3, s80, {p}"); e("s_cmp_ge_u32 s3, 7"); e(f"s_cselect_b32 s{sT0}, 7, 0"); e(f"s_sub_u32 s3, s3, s{sT0}")
        e(f"s_lshl_b32 s{sPc+p}, s3, 12")
    c1 = -2.0 * math.sqrt(2.0 / math.pi) * math.log2(math.e)
    e(f"s_mov_b32 s{sGK}, {f32(c1*0.044715)}"); e(f"s_mov_b32 s{sGK+1}, {f32(c1)}")
    e(f"s_cmp_eq_u32 s{sRo}, 2"); e(f"s_cselect_b32 s{sSkip}, 3, 7")
    e(f"s_cmp_eq_u32 s{sRo}, 3"); e(f"s_cselect_b32 s{sSkip}, 0, s{sSkip}")
    e(f"s_lshl_b32 s{sT0}, s{sWcol}, 5")
    for u in range(4):
        e(f"s_add_u32 s3, s{sWave}, {u}"); e(f"s_and_b32 s{sTT+u}, s3, 3")
        e(f"s_lshl_b32 s3, s{sTT+u}, 11"); e(f"s_add_u32 s{sHst+u}, s3, s{sT0}")
    e(f"s_mul_i32 s{sW2b}, s{sWave}, {448*1024}"); e(f"s_lshl_b32 s3, s{sC}, 7"); e(f"s_add_u32 s{sW2b}, s{sW2b}, s3")
    e(f"s_lshr_b32 s3, s{sWave}, 1"); e(f"s_mul_i32 s{sW2l}, s3, 49152"); e(f"s_and_b32 s3, s{sWave}, 1"); e("s_lshl_b32 s3, s3, 13"); e(f"s_add_u32 s{sW2l}, s{sW2l}, s3")
    e(f"s_lshr_b32 s3, s{sJ}, 2"); e(f"s_and_b32 s{sM}, s{sRo}, 1"); e(f"s_lshl1_add_u32 s{sM}, s3, s{sM}")
    e("v_lshrrev_b32 v2, 1, v1"); e("v_and_b32 v2, 7, v2"); e(f"v_lshrrev_b32 v3, 5, v{vL}"); e("v_xor_b32 v2, v2, v3")
    e("v_lshlrev_b32 v2, 4, v2"); e("v_lshl_add_u32 v2, v1, 7, v2"); e(f"v_add_u32 v{vXR}, s{sW4K}, v2")
    for s in range(1, 4): e(f"v_xor_b32 v{vXR+s}, {s<<5}, v{vXR}")
    e(f"v_lshlrev_b32 v2, 4, v3"); e(f"v_add_u32 v2, {SCR}, v2")
    for u in range(4): e(f"v_lshl_add_u32 v{vSA+u}, s{sTT+u}, 9, v2")
    e(f"v_bfe_u32 v2, v{vL}, 2, 2")
    e("v_lshl_add_u32 v1, v3, 3, v2"); e("v_lshlrev_b32 v1, 8, v1")
    e(f"v_bfe_u32 v{vTMP}, v{vL}, 4, 1"); e(f"v_lshlrev_b32 v{vTMP}, 5, v{vTMP}")
    e(f"v_and_b32 v{vTMP+1}, 3, v{vL}"); e(f"v_lshl_add_u32 v{vTMP}, v{vTMP+1}, 3, v{vTMP}")
    e(f"v_add_u32 v1, v1, v{vTMP}"); e(f"v_add_u32 v1, {WSL}, v1")
    for u in range(4):
        e(f"v_xor_b32 v{vTMP+1}, s{sTT+u}, v2"); e(f"v_lshl_add_u32 v{vTR+u}, v{vTMP+1}, 6, v1")
    e("v_lshl_add_u32 v1, v3, 2, v2"); e(f"v_lshl_add_u32 v1, v1, 7, v{vTMP}"); e(f"v_add_u32 v1, s{sW2l}, v1")
    e(f"v_bfe_u32 v2, v{vL}, 3, 1"); e(f"s_and_b32 s3, s{sWave}, 1"); e("v_xor_b32 v2, s3, v2")
    e(f"v_lshl_add_u32 v{vW2T}, v2, 6, v1"); e(f"v_xor_b32 v{vW2T+1}, 64, v{vW2T}")
    e(f"v_lshrrev_b32 v1, 3, v{vL}"); e("v_lshlrev_b32 v1, 10, v1")
    e(f"v_bfe_u32 v2, v{vL}, 4, 1"); e("v_lshlrev_b32 v2, 2, v2"); e(f"v_and_b32 v3, 7, v{vL}"); e("v_xor_b32 v2, v2, v3")
    e(f"v_lshl_add_u32 v{vW2D}, v2, 4, v1")
    for q in range(1, 4): e(f"v_add_u32 v{vW2D+q}, {q*7168}, v{vW2D}")
    e(f"s_mul_i32 s3, s{sS2}, {112*1024}"); e(f"v_lshl_add_u32 v{vHS}, v{vL}, 4, s3")
    e(f"v_lshrrev_b32 v1, 4, v{vL}"); e("v_lshlrev_b32 v3, 4, v1"); e(f"v_bfe_u32 v2, v{vL}, 2, 1"); e("v_lshl_add_u32 v3, v2, 6, v3")
    e(f"s_lshl_b32 s3, s{sWave}, 9"); e("s_add_u32 s3, s3, %d" % SCR); e(f"v_add_u32 v{vCSA}, s3, v3")
    e("v_xor_b32 v1, v1, v2"); e("v_and_b32 v1, 1, v1")
    e("v_add_u32 v1, -1, v1"); e(f"v_and_b32 v{vSEL}, 0x3f803f80, v1")
    for k in range(1, 4): e(f"v_mov_b32 v{vSEL+k}, v{vSEL}")
    e(f"v_mov_b32 v{vSQ}, 0"); e(f"v_mov_b32 v{vSQ+1}, 0")
    e(f"s_cmp_lt_u32 s{sRo}, 2"); e("s_cbranch_scc1 L_nogen")
    snap = a.snapshot()
    e(f"v_and_b32 v1, 31, v{vL}"); e(f"s_lshl_b32 s3, s{sM}, 5"); e("v_add_u32 v1, s3, v1")
    e("v_mov_b32 v2, 0x100"); e("v_cmp_eq_u32 vcc, 0, v1"); e("v_cndmask_b32 v1, v1, v2, vcc")
    e("v_cvt_f32_u32 v1, v1"); e(f"v_mul_f32 v1, {f32(1/512)}, v1")
    e(f"s_add_u32 s3, s{sKc0}, s{sWave}"); e("s_and_b32 s3, s3, 7"); e("s_lshl_b32 s3, s3, 6")
    e(f"v_lshrrev_b32 v2, 5, v{vL}"); e("v_lshl_add_u32 v2, v2, 3, s3"); e("v_cvt_f32_u32 v2, v2"); e("v_mul_f32 v2, v1, v2")
    e(f"v_lshlrev_b32 v3, 4, v{vL}"); e(f"v_add_u32 v3, s{sW4K}, v3"); e(f"v_add_u32 v3, {MP}, v3")
    G = ACC
    for s in range(4):
        for jj in range(8): e(f"v_fmamk_f32 v{G+jj}, v1, {f32(16*s+jj)}, v2")
        for jj in range(8): e(f"v_cos_f32 v{G+8+jj}, v{G+jj}")
        for jj in range(8): e(f"v_sin_f32 v{G+16+jj}, v{G+jj}")
        o = G + 24 + (s & 1) * 8
        for jj in range(4): e(f"v_cvt_pk_bf16_f32 v{o+jj}, v{G+8+2*jj}, v{G+9+2*jj}")
        for jj in range(4): e(f"v_cvt_pk_bf16_f32 v{o+4+jj}, v{G+16+2*jj}, v{G+17+2*jj}")
        e(f"ds_write_b128 v3, v[{o}:{o+3}] offset:{s*1024}")
        e(f"ds_write_b128 v3, v[{o+4}:{o+7}] offset:{16384+s*1024}")
    a.wait(lg=0)
    a.label("L_nogen"); a.restore(snap); e("s_nop 1")
    run(d1[5:])
    stamp("setup")
    piece_tok = {}
    def piece_dma(p):
        sl = (p + 2) % 3; L = []
        for hf in range(2):
            if hf == 0: L += [f"s_lshl4_add_u32 s3, s{sPc+p}, s{sW2b}"]
            else: L.append("s_add_u32 s3, s3, 0x8000")
            L.append(f"s_add_u32 m0, s{sW2l}, {sl*16384 + hf*4096}")
            for q in range(4):
                t = f"buffer_load_dwordx4 v{vW2D+q}, s[{SW2}:{SW2+3}], s3 offen offset:{q*1024} lds"
                if hf == 1 and q == 3:
                    def last(asm, t=t, p=p): piece_tok[p] = asm.e(t)
                    L.append(last)
                else: L.append(t)
        return L
    def piece_tr(p):
        sl = (p + 2) % 3; L = [lambda asm, p=p: asm.wait_tok(piece_tok[p])]
        for st in range(4):
            for aa in range(2):
                for u in range(2):
                    d = ((4*p + st)*2 + aa)*4 + 2*u
                    L.append(f"ds_read_b64_tr_b16 a[{d}:{d+1}], v{vW2T+aa} offset:{sl*16384 + (16*st + 8*u)*128}")
        return L
    LG0 = lambda asm: asm.wait(lg=0)
    def reads(g):
        n, s = divmod(g, 4); sl = n % 3; b = WF + (g & 1)*16
        L = [f"ds_read_b128 v[{X0+4*g}:{X0+4*g+3}], v{vXR+s} offset:{XS + sl*16384}"]
        for u in range(4):
            for pt in range(2):
                L.append(f"ds_read_b64_tr_b16 a[{b+4*u+2*pt}:{b+4*u+2*pt+1}], v{vTR+u} offset:{sl*16384 + (16*s + 4*pt)*256}")
        return L
    a.wait_tok(stage_tok[0], lg=0); e("s_barrier")
    stamp("bar0")
    run(reads(0))
    dq = dma_list(2)
    for g in range(32):
        n, s = divmod(g, 4); b = WF + (g & 1)*16; x = X0 + 4*g
        def mm(u):
            c = "0" if g == 0 else f"v[{ACC+16*u}:{ACC+16*u+15}]"
            return f"v_mfma_f32_32x32x16_bf16 v[{ACC+16*u}:{ACC+16*u+15}], a[{b+4*u}:{b+4*u+3}], v[{x}:{x+3}], {c}"
        msum = f"v_mfma_f32_16x16x32_bf16 v[{vSUM}:{vSUM+3}], v[{vSEL}:{vSEL+3}], v[{x}:{x+3}], " + ("0" if g == 0 else f"v[{vSUM}:{vSUM+3}]")
        mcs = f"v_mfma_f32_16x16x32_bf16 v[{vCS}:{vCS+3}], a[{b}:{b+3}], v[{vSEL}:{vSEL+3}], " + ("0" if g == 0 else f"v[{vCS}:{vCS+3}]")
        sq = []
        for k in range(4):
            t = vTMP + 2*(k & 1)
            sq += [f"v_lshlrev_b32 v{t}, 16, v{x+k}", f"v_and_b32 v{t+1}, 0xffff0000, v{x+k}", f"v_fmac_f32 v{vSQ}, v{t}, v{t}", f"v_fmac_f32 v{vSQ+1}, v{t+1}, v{t+1}"]
        rd = reads(g + 1) if g < 31 else []
        first = mm(0)
        if s == 3 and n < 7:
            def first(asm, m=mm(0), n=n):
                asm.wait(lg=0); asm.e(m); asm.wait_tok(stage_tok[n+1]); asm.e("s_barrier")
            assert not dq
            if n + 3 <= 7: dq = dma_list(n + 3)
            else: dq = piece_dma(n + 3 - 8)
        take = []; nl = 0; lim = 3 if g < 3 else 2
        while dq and (nl < lim):
            it = dq.pop(0); take.append(it)
            if callable(it) or it.startswith("buffer"): nl += 1
        if g == 8:
            take += [f"v_add_u32 v1, {NONCE_K}, v{vStale}", "v_max_u32 v1, 1, v1", f"v_mov_b32 v2, s{sNd}", f"buffer_store_dword v1, v2, s[{SDBG}:{SDBG+3}], 0 offen sc1"]
        if g == 9:
            take += [f"v_lshlrev_b32 v2, 16, v{vB1}", f"v_and_b32 v1, 31, v{vL}", f"s_lshl_b32 s{sT0}, s{sWave}, 9", f"s_add_u32 s{sT0}, s{sT0}, {SCR}",
                     f"v_lshl_add_u32 v{vB1}, v1, 2, s{sT0}", f"ds_write_b32 v{vB1}, v2 offset:128"]
        if g == 31:
            take += [f"v_mov_b32 v{vNon}, 0", f"buffer_load_dword v{vNon}, v{vNon}, s[{SDBG}:{SDBG+3}], 0 offen sc1"]
        h = (len(take) + 1) // 2
        if g == 31:
            mains = [msum, mcs, first, mm(1), mm(2), mm(3)]
            gaps = [sq[0:2], sq[2:4], sq[4:10], sq[10:16], take, []]
        else:
            mains = [first, mm(1), mm(2), mm(3), msum, mcs]
            gaps = [rd[0:3] + sq[0:3], rd[3:6] + sq[3:6], rd[6:9] + sq[6:9], take[:h] + sq[9:12], sq[12:14], take[h:] + sq[14:16]]
        for m, gp in zip(mains, gaps):
            m(a) if callable(m) else e(m)
            run(gp)
        if s == 3 and n < 7: stamp(f"st{n}", 1 if n in (1, 4) else 2)
    assert not dq
    stamp("loopend")
    vRho = 36
    e("s_mov_b32 exec_lo, 0x00110011"); e("s_mov_b32 exec_hi, 0x00110011")
    e(f"ds_write_b128 v{vCSA}, v[{vCS}:{vCS+3}]")
    e("s_mov_b64 exec, -1")
    e(f"v_add_f32 v{vSQ}, v{vSQ}, v{vSQ+1}"); e(f"v_mul_f32 v1, {f32(1/512)}, v{vSUM}"); e(f"v_mov_b32 v{vSQ+1}, v{vSQ}")
    e("v_mul_f32 v2, v1, v1")
    a.wait(lg=0); e("s_barrier")
    CB = [4, 20]
    def csb_reads(hh):
        u, hf = divmod(hh, 2); cb = CB[hh & 1]
        return [f"ds_read_b128 v[{cb}:{cb+3}], v{vSA+u} offset:{64*hf}", f"ds_read_b128 v[{cb+8}:{cb+11}], v{vSA+u} offset:{128+64*hf}",
                f"ds_read_b128 v[{cb+4}:{cb+7}], v{vSA+u} offset:{64*hf+32}", f"ds_read_b128 v[{cb+12}:{cb+15}], v{vSA+u} offset:{128+64*hf+32}"]
    run(csb_reads(0))
    e(f"v_permlane32_swap_b32 v{vSQ}, v{vSQ+1}"); e(f"v_add_f32 v{vSQ}, v{vSQ}, v{vSQ+1}")
    e(f"v_fma_f32 v2, v{vSQ}, s{sT0}, -v2") if False else (e(f"v_mul_f32 v3, {f32(1/512)}, v{vSQ}"), e("v_sub_f32 v2, v3, v2"))
    e("v_max_f32 v2, 0, v2")
    e(f"v_add_f32 v3, {f32(1e-5)}, v2"); e("v_rsq_f32 v3, v3")
    e("v_mul_f32 v2, v2, v3"); e(f"v_fmaak_f32 v2, v2, v3, {f32(1e-5)}"); e("v_rsq_f32 v2, v2")
    e(f"ds_write_b32 v{vB1}, v3 offset:256")
    e(f"v_mul_f32 v{vRho}, v2, v3"); e(f"v_mul_f32 v{vRho+1}, -v1, v{vRho}")
    stamp("stats")
    T = 52
    P = lambda r, k: f"v[{r+2*k}:{r+2*k+1}]"
    for u in range(4):
        e(f"s_cmp_eq_u32 s{sTT+u}, s{sSkip}"); e(f"s_cbranch_scc1 L_skip{u}")
        for hf in range(2):
            hh = 2*u + hf; cb = CB[hh & 1]; A = ACC + 16*u + 8*hf
            V = []
            V += [f"v_pk_fma_f32 {P(T,k)}, v[{vRho}:{vRho+1}], {P(cb,k)}, {P(cb+8,k)} op_sel:[1,0,0] op_sel_hi:[1,1,1]" for k in range(4)]
            V += [f"v_pk_fma_f32 {P(A,k)}, {P(A,k)}, v[{vRho}:{vRho+1}], {P(T,k)} op_sel_hi:[1,0,1]" for k in range(4)]
            V += [f"v_pk_mul_f32 {P(T,k)}, {P(A,k)}, {P(A,k)}" for k in range(4)]
            V += [f"v_pk_fma_f32 {P(T,k)}, {P(T,k)}, s[{sGK}:{sGK+1}], s[{sGK}:{sGK+1}] op_sel:[0,0,1] op_sel_hi:[1,0,1]" for k in range(4)]
            V += [f"v_pk_mul_f32 {P(T,k)}, {P(A,k)}, {P(T,k)}" for k in range(4)]
            V += [f"v_exp_f32 v{T+k}, v{T+k}" for k in range(8)]
            V += [f"v_pk_add_f32 {P(T,k)}, {P(T,k)}, 1.0 op_sel_hi:[1,0]" for k in range(4)]
            V += [f"v_rcp_f32 v{T+k}, v{T+k}" for k in range(8)]
            V += [f"v_pk_mul_f32 {P(T,k)}, {P(A,k)}, {P(T,k)}" for k in range(4)]
            V += [f"v_cvt_pk_bf16_f32 v{A+k}, v{T+2*k}, v{T+2*k+1}" for k in range(4)]
            run(V[:4])
            if hh < 7: run(csb_reads(hh + 1))
            run(V[4:])
            last_store = e(f"buffer_store_dwordx4 v[{A}:{A+3}], v{vHS}, s[{SWS}:{SWS+3}], s{sHst+u} offen offset:{1024*hf}{HS}")
        if u < 3:
            e(f"s_branch L_next{u}")
            a.label(f"L_skip{u}")
            snap = a.snapshot()
            a.force_wait(lg=0); run(csb_reads(2*u + 2))
            a.label(f"L_next{u}"); a.restore(snap)
        else:
            a.label(f"L_skip{u}")
        stamp(f"g{u}", 2)
    del a.vm[-4:-2]
    a.force_wait(lg=0)
    stamp("gelu")
    vFlagA, vFlagV = 48, 49
    def nonce_get(asm):
        e(f"v_readfirstlane_b32 s{sNonce}, v{vNon}")
        e(f"s_cmp_lg_u32 s{sNonce}, 0"); e("s_cbranch_scc1 L_have_nonce")
        snap = a.snapshot()
        e(f"s_mov_b32 s{sCnt}, 0"); e("v_mov_b32 v1, 0")
        a.label("L_nonce_poll")
        a.raw(f"    buffer_load_dword v{vNon}, v1, s[{SDBG}:{SDBG+3}], 0 offen sc1")
        a.raw("    s_waitcnt vmcnt(0)")
        a.raw(f"    v_readfirstlane_b32 s{sNonce}, v{vNon}")
        a.raw(f"    s_add_u32 s{sCnt}, s{sCnt}, 1"); a.raw(f"    s_cmp_gt_u32 s{sCnt}, 0x80000"); a.raw("    s_cbranch_scc1 L_end")
        a.raw(f"    s_cmp_eq_u32 s{sNonce}, 0"); a.raw("    s_cbranch_scc1 L_nonce_poll")
        a.label("L_have_nonce"); a.restore(snap)
        e(f"s_lshl4_add_u32 s{sT0}, s{sS2}, s{sJ}"); e(f"s_lshl_b32 s{sT0}, s{sT0}, 6"); e(f"s_add_u32 s{sT0}, s{sT0}, {FH_OFF}")
        e(f"v_mov_b32 v{vFlagA}, s{sT0}"); e(f"v_mov_b32 v{vFlagV}, s{sNonce}")
    def hflag(asm):
        asm.wait_tok(last_store)
        asm.e("s_mov_b64 exec, 1")
        asm.e(f"buffer_store_dword v{vFlagV}, v{vFlagA}, s[{SWS}:{SWS+3}], 0 offen{FL}")
        asm.e("s_mov_b64 exec, -1")
        stamp("hflag")
    nonce_get(a)
    e(f"s_mov_b32 s{sZf}, {OOB}")
    e(f"s_cmp_ge_u32 s{sRo}, 2"); e("s_cbranch_scc1 L_dft")
    snap = a.snapshot()
    run(piece_tr(0)[:9]); run(piece_dma(2)); run(piece_tr(0)[9:]); run(piece_tr(1)); a.wait(lg=15); a.wait(lg=0)
    run(piece_dma(3)); hflag(a); run(piece_dma(4))
    run(piece_tr(2)); a.wait(lg=0); run(piece_dma(5))
    run(piece_tr(3)); a.wait(lg=0); run(piece_dma(6))
    run(piece_tr(4))
    a.force_wait(lg=0)
    e("s_branch L_join")
    a.label("L_dft"); a.restore(snap)
    FC, FN = 20, 28
    e(f"v_lshlrev_b32 v3, 4, v{vL}"); e(f"v_add_u32 v3, {MP}, v3")
    def mread(sg):
        b = WF + (sg & 3)*8
        return [f"ds_read_b128 a[{b}:{b+3}], v3 offset:{sg*1024}", f"ds_read_b128 a[{b+4}:{b+7}], v3 offset:{16384+sg*1024}"]
    run(mread(0)); run(mread(1))
    floads = [f"v_and_b32 v1, 31, v{vL}", "v_lshlrev_b32 v1, 14, v1", f"v_lshrrev_b32 v2, 5, v{vL}", "v_lshl_add_u32 v1, v2, 3, v1"]
    for q in range(2):
        for pt in range(2):
            floads.append(f"buffer_load_dwordx2 v[{FC+4*q+2*pt}:{FC+4*q+2*pt+1}], v1, s[{SHRE}:{SHRE+3}], 0 offen offset:{32*q+16*pt}")
            floads.append(f"buffer_load_dwordx2 v[{FN+4*q+2*pt}:{FN+4*q+2*pt+1}], v1, s[{SHIM}:{SHIM+3}], 0 offen offset:{32*q+16*pt}")
    CL, CH, SL, SH = 64, 80, 96, 112
    sched = {0: piece_dma(2), 1: piece_tr(0), 2: piece_tr(1), 3: [LG0] + piece_dma(3), 4: piece_dma(4), 5: floads,
             opt.get("cdflag", 7): [hflag], 8: piece_tr(2), 9: [LG0] + piece_dma(5), 11: piece_tr(3), 12: [LG0] + piece_dma(6), 14: piece_tr(4)}
    for sg in range(16):
        b = WF + (sg & 3)*8
        lo, hi_ = X0 + 4*sg, X0 + 4*(sg + 16)
        def mf(acc, x, bb): return f"v_mfma_f32_32x32x16_bf16 v[{acc}:{acc+15}], v[{x}:{x+3}], a[{bb}:{bb+3}], " + ("0" if sg == 0 else f"v[{acc}:{acc+15}]")
        side = sched.get(sg, []) + (mread(sg + 2) if sg < 14 else [])
        if sg == 15:
            side += [f"v_lshrrev_b32 v1, 5, v{vL}", "v_lshlrev_b32 v1, 4, v1", f"s_lshl_b32 s{sT0}, s{sWave}, 9", f"s_add_u32 s{sT0}, s{sT0}, {SCR+256}", f"v_add_u32 v1, s{sT0}, v1"]
            side += [f"ds_read_b128 v[{4+4*gq}:{7+4*gq}], v1 offset:{32*gq}" for gq in range(4)]
            side += [f"v_and_b32 v1, 1, v{vL}", "v_lshlrev_b32 v1, 31, v1", "v_or_b32 v2, 0x3f800000, v1"]
        interleave(a, [mf(CL, lo, b), mf(CH, hi_, b), mf(SL, lo, b+4), mf(SH, hi_, b+4)], side)
    stamp("dftend", 2)
    a.wait(lg=0); e("s_barrier")
    AB, BB, NA = 112, 120, 52
    for k in range(8): e(f"v_pk_fma_f32 {P(CL,k)}, {P(CH,k)}, v[2:3], {P(CL,k)} op_sel_hi:[1,0,1]")
    for k in range(8): e(f"v_pk_fma_f32 {P(SL,k)}, {P(SH,k)}, v[2:3], {P(SL,k)} op_sel_hi:[1,0,1]")
    for k in range(8): e(f"v_pk_mul_f32 {P(CL,k)}, {P(CL,k)}, {P(4,k)}")
    for k in range(8): e(f"v_pk_mul_f32 {P(SL,k)}, {P(SL,k)}, {P(4,k)}")
    for k in range(8): e(f"v_cvt_pk_bf16_f32 v{AB+k}, v{CL+2*k}, v{CL+2*k+1}")
    for k in range(8): e(f"v_cvt_pk_bf16_f32 v{BB+k}, v{SL+2*k}, v{SL+2*k+1}")
    ZR, ZI = 64, 80
    def zm(acc, f, o, first): return f"v_mfma_f32_32x32x16_bf16 v[{acc}:{acc+15}], v[{f}:{f+3}], v[{o}:{o+3}], " + ("0" if first else f"v[{acc}:{acc+15}]")
    zmf = [zm(ZR, FC, AB, True), zm(ZR, FN, BB, False), zm(ZR, FC+4, AB+4, False), zm(ZR, FN+4, BB+4, False),
           zm(ZI, FC, BB, True), zm(ZI, FC+4, BB+4, False), zm(ZI, FN, NA, False), zm(ZI, FN+4, NA+4, False)]
    side = [f"v_xor_b32 v{NA+k}, 0x80008000, v{AB+k}" for k in range(8)]
    side += [f"v_lshrrev_b32 v4, 5, v{vL}", "v_lshlrev_b32 v1, 11, v4", f"v_and_b32 v2, 31, v{vL}", "v_lshl_add_u32 v1, v2, 4, v1",
             f"s_lshl_b32 s3, s{sWave}, 2", f"s_add_u32 s3, s3, {MP}", "v_add_u32 v1, s3, v1",
             "v_lshlrev_b32 v4, 16, v4", "v_lshl_add_u32 v4, v2, 4, v4", f"v_add_u32 v3, s{sW4K}, v3",
             f"s_lshl_b32 s3, s{sWave}, 19", f"s_lshl_b32 s{sT0}, s{sI}, 12", f"s_add_u32 s3, s3, s{sT0}",
             f"s_lshl_b32 s{sT0}, s{sM}, 9", f"s_add_u32 s3, s3, s{sT0}", f"s_add_u32 s3, s3, {Z_OFF}",
             f"s_lshl2_add_u32 s{sT0}, s{sM}, s{sWave}", f"s_lshl4_add_u32 s{sT0}, s{sT0}, s{sI}", f"s_lshl_b32 s{sT0}, s{sT0}, 6", f"s_add_u32 s{sZf}, s{sT0}, {FZ_OFF}"]
    interleave(a, zmf, side, per=[4, 4, 4, 4, 4, 4, 4, 0])
    for r in range(16):
        e(f"v_cvt_pk_bf16_f32 v{96+r}, v{ZR+r}, v{ZI+r}")
        e(f"ds_write_b32 v1, v{96+r} offset:{(8*(r>>2) + (r&3))*512}")
    stamp("zw", 2)
    a.wait(lg=0); e("s_barrier")
    for k in range(4): e(f"ds_read_b128 v[{64+4*k}:{67+4*k}], v3 offset:{k*1024}")
    for k in range(4):
        e(f"buffer_store_dwordx4 v[{64+4*k}:{67+4*k}], v4, s[{SWS}:{SWS+3}], s3 offen{HS}")
        if k < 3: e("s_add_u32 s3, s3, 0x20000")
    a.force_wait(lg=0)
    e("s_nop 1")
    a.label("L_join")
    a.vm = [(set(), 10**6 + k) for k in range(20)]; a.ntok = 2*10**6; a.lg = []; a.hist = []
    stamp("join")
    sCt0, sTt0, sMir, sT1p = 9, 10, 11, 12
    e(f"s_and_b32 s{sCt0}, s{sWave}, 1"); e(f"s_lshr_b32 s{sTt0}, s{sWave}, 1")
    vPA = 50
    e(f"v_bfe_u32 v1, v{vL}, 2, 1"); e(f"v_and_b32 v2, 3, v{vL}"); e("v_lshl_add_u32 v1, v1, 9, v2")
    e(f"s_lshl2_add_u32 s3, s{sT1}, s{sWave}"); e("s_lshl_b32 s3, s3, 8"); e(f"s_add_u32 s3, s3, {FH_OFF}")
    e(f"v_lshl_add_u32 v{vPA}, v1, 6, s3")
    e(f"buffer_load_dword v51, v{vPA}, s[{SWS}:{SWS+3}], 0 offen{PL}")
    sCol = 13
    e(f"s_lshl1_add_u32 s{sCol}, s{sC}, s{sCt0}"); e(f"s_lshl_b32 s{sCol}, s{sCol}, 5")
    e(f"v_lshrrev_b32 v3, 5, v{vL}"); e("v_lshlrev_b32 v1, 3, v3"); e(f"s_lshl_b32 s3, s{sCol}, 1")
    for gq in range(4): e(f"buffer_load_dwordx2 v[{52+2*gq}:{53+2*gq}], v1, s[{SB2}:{SB2+3}], s3 offen offset:{16*gq}")
    vH = 36
    e(f"s_lshl_b32 s3, s{sTt0}, 5"); e(f"s_add_u32 s{sT0}, s3, s{sT1}")
    e(f"s_xor_b32 s{sT1_}, s{sT0}, 32")
    e(f"s_mul_i32 s3, s{sWave}, {28*1024}"); e(f"v_lshl_add_u32 v1, v{vL}, 4, s3")
    e(f"s_mul_i32 s3, s{sT0}, {112*1024}"); e(f"v_add_u32 v{vH}, s3, v1")
    e(f"s_mul_i32 s3, s{sT1_}, {112*1024}"); e(f"v_add_u32 v{vH+1}, s3, v1")
    vTok, vOut, vBase, vA0, vZA, vZP = 38, 39, 40, 41, 42, 43
    e(f"v_and_b32 v2, 31, v{vL}"); e(f"v_lshl_add_u32 v{vTok}, v2, 6, s{sT0}")
    e(f"s_lshl_b32 s3, s{sCol}, 1"); e(f"v_lshl_add_u32 v{vOut}, v{vTok}, 10, s3")
    e(f"s_cmp_ge_u32 s{sC}, 4"); e(f"s_cselect_b32 s{sMir}, 1, 0")
    e(f"s_mov_b32 s3, {f32(-1/2048)}"); e(f"s_cselect_b32 s3, {f32(1/2048)}, s3")
    e(f"v_cvt_f32_u32 v{vBase}, v{vTok}"); e(f"v_mul_f32 v{vBase}, s3, v{vBase}")
    e("v_lshlrev_b32 v1, 1, v3"); e("v_cvt_f32_u32 v1, v1"); e(f"v_mul_f32 v{vA0}, v1, v{vBase}")
    e(f"s_sub_u32 s3, 32, s{sT1}"); e("s_and_b32 s3, s3, 31"); e(f"s_cmp_eq_u32 s{sMir}, 1"); e(f"s_cselect_b32 s{sT1p}, s3, s{sT1}")
    e(f"v_add_u32 v1, s{sCol}, v2")
    e("v_sub_u32 v46, 0x200, v1"); e("v_and_b32 v46, 0xff, v46")
    e(f"s_cselect_b64 vcc, -1, 0"); e("s_nop 0"); e("v_cndmask_b32 v46, v1, v46, vcc")
    e(f"s_lshl_b32 s3, s{sT1p}, 16"); e(f"s_add_u32 s3, s3, {Z_OFF}")
    e("v_lshlrev_b32 v47, 12, v3"); e("v_lshl_add_u32 v47, v46, 4, v47"); e("v_add_u32 v47, s3, v47")
    e(f"v_mov_b32 v60, {OOB}"); e("v_cmp_eq_u32 vcc, 0, v1"); e(f"v_cndmask_b32 v{vZA}, v47, v60, vcc")
    e("v_lshrrev_b32 v46, 5, v46"); e(f"v_readlane_b32 s3, v46, 0"); e(f"v_readlane_b32 s{sT0}, v46, 31")
    e(f"v_mov_b32 v46, s3"); e(f"v_mov_b32 v47, s{sT0}"); e(f"v_and_b32 v60, 16, v{vL}"); e("v_cmp_eq_u32 vcc, 0, v60"); e("v_cndmask_b32 v46, v46, v47, vcc")
    e(f"s_lshr_b32 s3, s{sT1p}, 3"); e("v_lshl_add_u32 v46, v46, 2, s3"); e(f"v_and_b32 v47, 15, v{vL}"); e("v_lshl_add_u32 v46, v46, 4, v47")
    e("v_lshlrev_b32 v46, 6, v46"); e(f"v_add_u32 v{vZP}, {FZ_OFF}, v46")
    e(f"v_mov_b32 v46, s{sZf}")
    a.force_wait(vm=0)
    e("s_mov_b64 exec, 1")
    e(f"buffer_store_dword v{vFlagV}, v46, s[{SWS}:{SWS+3}], 0 offen{FL}")
    e("s_mov_b64 exec, -1")
    stamp("poll1", 2)
    poll_loop("L_h", 51, vPA, SWS)
    stamp("hready")
    RING = 128; RD = opt.get("ring", 8)
    def hload(st):
        p, s4 = divmod(st, 4); r = RING + (st % RD)*8
        return [f"buffer_load_dwordx4 v[{r+4*b}:{r+4*b+3}], v{vH+b}, s[{SWS}:{SWS+3}], s{sPc+p} offen offset:{s4*1024}{HL}" for b in range(2)]
    for st in range(RD): run(hload(st))
    stamp("burst", 2)
    run(piece_tr(5)[1:]); run(piece_tr(6)[1:])
    for gq in range(4):
        for k in range(2):
            e(f"v_lshlrev_b32 v{ACC+4*gq+2*k}, 16, v{52+2*gq+k}"); e(f"v_and_b32 v{ACC+4*gq+2*k+1}, 0xffff0000, v{52+2*gq+k}")
    a.wait(lg=0); e("s_barrier")
    MX = 4
    genq = []
    for q in range(8):
        for w_ in range(4):
            K = 4*q + (w_ & 1) + 32*(w_ >> 1); t = 44 + 3*(w_ & 1)
            genq.append([f"v_fmamk_f32 v{t}, v{vBase}, {f32(K)}, v{vA0}", f"v_cos_f32 v{t+1}, v{t}", f"v_sin_f32 v{t+2}, v{t}", f"v_cvt_pk_bf16_f32 v{MX+4*q+w_}, v{t+1}, v{t+2}"])
    gen_flat = []
    for k in range(0, 32, 2):
        A_, B_ = genq[k], genq[k+1]
        gen_flat += [A_[0], B_[0], A_[1], A_[2], B_[1], B_[2], A_[3], B_[3]]
    ZF = 208; XF = 240; SACC = 192; XU = 44
    assert RING + RD*8 <= SACC
    ZSTEP = opt.get("zstep", 8)
    for st in range(28):
        r = RING + (st % RD)*8
        def mf(sig):
            aa, bb = sig & 1, sig >> 1
            w = (st*2 + aa)*4; acc = ACC + 16*sig
            c = "0" if (st == 0 and sig) else f"v[{acc}:{acc+15}]"
            return f"v_mfma_f32_32x32x16_bf16 v[{acc}:{acc+15}], a[{w}:{w+3}], v[{r+4*bb}:{r+4*bb+3}], {c}"
        side = gen_flat[:8]; gen_flat = gen_flat[8:]
        post = hload(st + RD) if st + RD < 28 else []
        if st == ZSTEP: post.append(f"buffer_load_dword v51, v{vZP}, s[{SWS}:{SWS+3}], 0 offen{PL}")
        if st == 2:
            post += [f"v_lshrrev_b32 v1, 5, v{vL}", f"v_lshl_add_u32 v1, v1, 3, v{vOut}"]
            post += [f"buffer_load_dwordx2 v[{XF+2*gq}:{XF+2*gq+1}], v1, s[{SX}:{SX+3}], 0 offen offset:{16*gq}" for gq in range(4)]
        if st >= 20:
            k0 = (st - 20)*2
            side += [(f"v_lshlrev_b32 v{XU+k}, 16, v{XF+k//2}") if k % 2 == 0 else f"v_and_b32 v{XU+k}, 0xffff0000, v{XF+k//2}" for k in (k0, k0+1)]
        interleave(a, [mf(0), mf(1), mf(2), mf(3)], side)
        run(post)
        if st % 4 == 0: stamp(f"p{st}", 2)
        if st == ZSTEP + RD:
            assert 16 <= st < 20
            poll_loop("L_z", 51, vZP, SWS)
            stamp("zready", 2)
            for q in range(8):
                e(f"s_mov_b32 s3, {q*8192}")
                e(f"buffer_load_dwordx4 v[{ZF+4*q}:{ZF+4*q+3}], v{vZA}, s[{SWS}:{SWS+3}], s3 offen{HL}")
    assert not gen_flat
    stamp("p2end")
    e(f"v_lshlrev_b32 v1, 4, v{vL}"); e(f"v_add_u32 v1, {RED}, v1")
    wr = []
    for sig in range(1, 4):
        ad = f"v{1+sig}" if sig < 3 else "v60"
        e(f"s_xor_b32 s3, s{sWave}, {sig}"); e("s_mul_i32 s3, s3, 12288"); e(f"v_add_u32 {ad}, s3, v1")
        wr += [f"ds_write_b128 {ad}, v[{ACC+16*sig+4*qd}:{ACC+16*sig+4*qd+3}] offset:{(sig-1)*4096+qd*1024}" for qd in range(4)]
    smf = [f"v_mfma_f32_32x32x16_bf16 v[{SACC}:{SACC+15}], v[{ZF+4*q}:{ZF+4*q+3}], v[{MX+4*q}:{MX+4*q+3}], " + ("0" if q == 0 else f"v[{SACC}:{SACC+15}]") for q in range(8)]
    interleave(a, smf, wr)
    e(f"s_mul_i32 s3, s{sWave}, 12288"); e("v_add_u32 v1, s3, v1")
    e(f"s_mov_b32 s{sGK}, {f32(-math.log2(math.e))}")
    e(f"v_lshrrev_b32 v2, 5, v{vL}"); e(f"v_lshl_add_u32 v{vOut}, v2, 4, v{vOut}")
    stamp("redw", 2)
    a.wait(lg=0); e("s_barrier")
    stamp("redbar", 2)
    order = [sig*4 + qd for qd in range(4) for sig in range(3)]
    for k in order: e(f"ds_read_b128 v[{ACC+16+4*k}:{ACC+19+4*k}], v1 offset:{k*1024}")
    T = 4
    for hf in range(2):
        K = range(4*hf, 4*hf + 4); K2 = range(8*hf, 8*hf + 8)
        for sig in range(1, 4):
            for k in K: e(f"v_pk_add_f32 {P(ACC,k)}, {P(ACC,k)}, {P(ACC+16*sig,k)}")
        for k in K: e(f"v_pk_mul_f32 {P(T,k)}, {P(ACC,k)}, s[{sGK}:{sGK+1}] op_sel_hi:[1,0]")
        for k in K2: e(f"v_exp_f32 v{T+k}, v{T+k}")
        for k in K: e(f"v_pk_add_f32 {P(T,k)}, {P(T,k)}, 1.0 op_sel_hi:[1,0]")
        for k in K2: e(f"v_rcp_f32 v{T+k}, v{T+k}")
        for k in K: e(f"v_pk_mul_f32 {P(T,k)}, {P(T,k)}, {P(ACC,k)}")
        for k in K: e(f"v_pk_fma_f32 {P(T,k)}, {P(T,k)}, {P(SACC,k)}, {P(XU,k)}")
        for k in K: e(f"v_cvt_pk_bf16_f32 v{20+k}, v{T+2*k}, v{T+2*k+1}")
        q = hf
        e(f"v_permlane32_swap_b32 v{20+4*q}, v{22+4*q}"); e(f"v_permlane32_swap_b32 v{21+4*q}, v{23+4*q}")
        e(f"buffer_store_dwordx4 v[{20+4*q}:{23+4*q}], v{vOut}, s[{SOUT}:{SOUT+3}], 0 offen offset:{32*q}" + opt.get("outflag", ""))
    if ST:
        stamp("epi"); a.force_wait(vm=0); stamp("end")
        a.raw("    s_memrealtime s[100:101]"); a.raw("    s_waitcnt lgkmcnt(0)"); a.raw("    v_writelane_b32 v62, s100, 61")
        e(f"s_lshl_b32 s3, s2, 2"); e(f"s_add_u32 s3, s3, s{sWave}"); e("s_lshl_b32 s3, s3, 8"); e(f"s_add_u32 s3, s3, 0xE00000")
        e(f"v_lshlrev_b32 v1, 2, v{vL}")
        e(f"buffer_store_dword v62, v1, s[{SWS}:{SWS+3}], s3 offen")
    if opt.get("padrt") or opt.get("padcy"):
        a.label("L_pad")
        a.raw("    s_memrealtime s[98:99]" if opt.get("padrt") else "    s_memtime s[98:99]"); a.raw("    s_waitcnt lgkmcnt(0)")
        a.raw("    s_sub_u32 s98, s98, s100"); a.raw(f"    s_cmp_lt_u32 s98, {opt.get('padrt') or opt.get('padcy')}"); a.raw("    s_cbranch_scc1 L_pad")
    a.label("L_end")
    a.raw("    s_endpgm")
    a.names = names
    return a

HEAD = open("cdna_kernels/%s.s.ref" % NAME).read().split("; Override launch geometry")[0]
def build(opt):
    a = gen(opt)
    s = HEAD + f"; @launch grid=(256,1,1) block=(256,1,1) lds={LDS_BYTES}\n"
    s += f""".amdgcn_target "amdgcn-amd-amdhsa--gfx950"
.text
.globl {NAME}_kernel
.p2align 8
.type {NAME}_kernel,@function
"""
    s += "; stamps: " + " ".join(a.names) + "\n" if a.names else ""
    s += a.text()
    s += f""".section .rodata,"a"
.p2align 6
.amdhsa_kernel {NAME}_kernel
  .amdhsa_next_free_vgpr 512
  .amdhsa_next_free_sgpr 102
  .amdhsa_accum_offset 256
  .amdhsa_group_segment_fixed_size 0
  .amdhsa_kernarg_size 104
  .amdhsa_user_sgpr_count 2
  .amdhsa_user_sgpr_kernarg_segment_ptr 1
  .amdhsa_system_sgpr_workgroup_id_x 1
.end_amdhsa_kernel
"""
    return s, a

if __name__ == "__main__":
    opt = {}
    out = sys.argv[1]
    for kv in sys.argv[2:]:
        k, v = kv.split("=")
        opt[k] = int(v) if v.lstrip("-").isdigit() else v.replace("_", " ")
    s, a = build(opt)
    open(out, "w").write(s)
    print("instrs", a.count, "nop states", a.nops)
```
